```python
import torch

def _softmax(x, axis=-1):
    return torch.softmax(x, dim=axis)
def _gelu(x):
    return torch.nn.functional.gelu(x, approximate="tanh")
def _silu(x):
    return torch.nn.functional.silu(x)
def _sigmoid(x):
    return torch.sigmoid(x)
def _layernorm(x, axis=-1, eps=1e-5):
    m = x.mean(dim=axis, keepdim=True)
    v = x.var(dim=axis, keepdim=True, unbiased=False)
    return (x - m) / torch.sqrt(v + eps)
def _scatter_add(tgt, idx, src, axis=0):
    return tgt.clone().index_add_(axis, idx, src)
def _segment_sum(src, seg, n):
    out = torch.zeros((n,) + src.shape[1:], dtype=src.dtype)
    return out.index_add_(0, seg, src)
def _pad(x, pw):
    flat = tuple(v for pair in reversed(pw) for v in pair)
    return torch.nn.functional.pad(x, flat)

kernel_name = 'standalone__fused_io_aware_attn__prompt'

def setup_inputs():

    _w = (lambda a: (lambda t: t.to(torch.bfloat16) if t.is_floating_point() else t)(torch.as_tensor(a)))
    B, H, S = 1, 32, 2048
    Dh = max(1, 512 // 32)
    return {
        "q": _w((lambda *s: torch.randn(*s, dtype=torch.bfloat16) * 0.8)(B, H, S, Dh)),
        "k": _w((lambda *s: torch.randn(*s, dtype=torch.bfloat16) * 0.8)(B, H, S, Dh)),
        "v": _w((lambda *s: torch.randn(*s, dtype=torch.bfloat16) * 0.05)(B, H, S, Dh)),
    }

def reference(q, k, v):
    scale = q.shape[-1] ** -0.5
    s = torch.einsum('bhqd,bhkd->bhqk', q, k) * scale
    p = _softmax(s, axis=-1)
    return torch.einsum('bhqk,bhkd->bhqd', p, v)
```

```python
import sys, argparse

NAME = "standalone__fused_io_aware_attn__prompt"

HEADER = """; Kernarg layout for this problem (48 bytes, ptrs only, base s[0:1]):
"""

L_ONES = 0
L_K = 8192
L_V = L_K + 65536
L_X = L_V + 65536
XSLOT = 2304
LDS_BYTES = L_X + 8 * XSLOT

vF = 1
vL16 = 2
vAK = 3
vAV = 4
vINC = 5
vIDX = 6
vXW = 7
vXW4 = 8
vXR = 9
vXR4 = 10
vT = 12
Q0 = 20; Q1 = 24
KF = [28, 32]
VA = [36, 40]
VB = [44, 48]
S0 = 52; S1 = 68
ACC0 = 84; ACC1 = 100
CB = 116
NVGPR = 132

sQ, sK, sV, sO = 4, 6, 8, 10
SRDK, SRDV, SRDQ, SRDO = 12, 16, 20, 24
sW, sHEAD, sQB, sQP, sKH = 28, 29, 30, 31, 32
sQ1OFF, sQ0OFF, sWL, sT0, sT1 = 33, 34, 35, 36, 37
sG, sNB, sSLOW, sCNT = 38, 39, 40, 41
sTS = 44

def r(base, n): return f"v[{base}:{base+n-1}]"

class Gen:
    def __init__(self, stamps=False):
        self.L = []
        self.stamps = stamps
        self.nst = 0
    def __call__(self, s): self.L.append("    " + s)
    def label(self, s): self.L.append(s + ":")
    def c(self, s): self.L.append("    ; " + s)
    def stamp(self):
        if self.stamps:
            i = sTS + 2 * self.nst
            self(f"s_memtime s[{i}:{i+1}]")
            self.nst += 1

def exps(g, S, lo, hi):
    for i in range(lo, hi): g(f"v_exp_f32 v{S+i}, v{S+i}")

def smf(g, acc, A, B): g(f"v_smfmac_f32_32x32x32_bf16 {r(acc,16)}, {r(A,4)}, {r(B,8)}, v{vIDX}")
def qk(g, S, K, Q, C="0"): g(f"v_mfma_f32_32x32x16_bf16 {r(S,16)}, {r(K,4)}, {r(Q,4)}, {C}")
def trd(g, dst, off): g(f"ds_read_b64_tr_b16 {r(dst,2)}, v{vAV} offset:{off}")
def krd(g, dst, off): g(f"ds_read_b128 {r(dst,4)}, v{vAK} offset:{off}")

def body(g, p, entry=None, tail=None):
    f = p & 1
    vo = (p + 1) * 1024
    ko = (p + 2) * 1024
    exps(g, S1, 12, 16)
    exps(g, S0, 0, 2)
    smf(g, ACC1, VB[f ^ 1], S1 + 8)
    if entry: g.label(entry)
    trd(g, VA[f ^ 1], vo)
    exps(g, S0, 2, 7)
    qk(g, S1, KF[f], Q1)
    trd(g, VA[f ^ 1] + 2, vo + 128)
    exps(g, S0, 7, 12)
    smf(g, ACC0, VA[f], S0)
    krd(g, KF[f], ko)
    exps(g, S0, 12, 16)
    exps(g, S1, 0, 2)
    smf(g, ACC0, VB[f], S0 + 8)
    trd(g, VB[f ^ 1], vo + 512)
    exps(g, S1, 2, 7)
    qk(g, S0, KF[f ^ 1], Q0)
    trd(g, VB[f ^ 1] + 2, vo + 640)
    exps(g, S1, 7, 12)
    smf(g, ACC1, VA[f], S1)
    g("s_waitcnt lgkmcnt(0)")
    if tail: tail()

def scale_q(g, Q):
    for i in range(4):
        a, b = vT + 2 * i, vT + 2 * i + 1
        g(f"v_lshlrev_b32 v{a}, 16, v{Q+i}")
        g(f"v_and_b32 v{b}, 0xffff0000, v{Q+i}")
    for i in range(8):
        g(f"v_mul_f32 v{vT+i}, 0x3eb8aa3b, v{vT+i}")
    for i in range(4):
        g(f"v_cvt_pk_bf16_f32 v{Q+i}, v{vT+2*i}, v{vT+2*i+1}")

def build(stamps=False, force_slow=False):
    g = Gen(stamps)
    g.L.append(HEADER.rstrip("\n"))
    g.L.append(f"; @launch grid=(256,1,1) block=(512,1,1) lds={LDS_BYTES}")
    g.L.append('.amdgcn_target "amdgcn-amd-amdhsa--gfx950"')
    g.L.append(".text")
    g.L.append(f".globl {NAME}_kernel")
    g.L.append(".p2align 8")
    g.L.append(f".type {NAME}_kernel,@function")
    g.label(f"{NAME}_kernel")
    g("s_cmp_ge_u32 s2, 256")
    g("s_cbranch_scc1 L_end")
    g("s_load_dwordx8 s[4:11], s[0:1], 0")
    if stamps:
        g("s_load_dwordx2 s[42:43], s[0:1], 40")
    g.stamp()
    g(f"v_lshrrev_b32 v{vT}, 6, v0")
    g(f"v_and_b32 v{vT+1}, 31, v0")
    g(f"v_readfirstlane_b32 s{sW}, v{vT}")
    g(f"v_and_b32 v{vT+2}, 63, v0")
    g(f"v_lshlrev_b32 v{vT+1}, 5, v{vT+1}")
    g(f"v_bfe_u32 v{vT+3}, v0, 5, 1")
    g(f"v_lshl_add_u32 v{vF}, v{vT+3}, 4, v{vT+1}")
    g(f"v_lshlrev_b32 v{vL16}, 4, v{vT+2}")
    g.c("scalar decode: head = (wg&7)*4 + (wg>>6), qblock = (wg>>3)&7")
    g(f"s_and_b32 s{sHEAD}, s2, 7")
    g(f"s_lshr_b32 s{sT0}, s2, 6")
    g(f"s_lshl_b32 s{sHEAD}, s{sHEAD}, 2")
    g(f"s_add_u32 s{sHEAD}, s{sHEAD}, s{sT0}")
    g(f"s_lshl_b32 s{sHEAD}, s{sHEAD}, 16")
    g(f"s_bfe_u32 s{sQB}, s2, 0x30003")
    g(f"s_lshl_b32 s{sQB}, s{sQB}, 13")
    g(f"s_add_u32 s{sQB}, s{sQB}, s{sHEAD}")
    g(f"s_and_b32 s{sQP}, s{sW}, 3")
    g(f"s_lshr_b32 s{sKH}, s{sW}, 2")
    g(f"s_lshl_b32 s{sT0}, s{sQP}, 11")
    g(f"s_add_u32 s{sT0}, s{sT0}, s{sQB}")
    g(f"s_lshl_b32 s{sT1}, s{sKH}, 10")
    g(f"s_add_u32 s{sQ1OFF}, s{sT0}, s{sT1}")
    g(f"s_xor_b32 s{sT1}, s{sT1}, 1024")
    g(f"s_add_u32 s{sQ0OFF}, s{sT0}, s{sT1}")
    g(f"s_lshl_b32 s{sWL}, s{sKH}, 15")
    g(f"s_lshl_b32 s{sT0}, s{sQP}, 10")
    g(f"s_add_u32 s{sWL}, s{sWL}, s{sT0}")
    g(f"s_mov_b32 s{SRDK+2}, 0x10000")
    g(f"s_mov_b32 s{SRDK+3}, 0x20000")
    g(f"s_mov_b32 s{SRDV+2}, 0x10000")
    g(f"s_mov_b32 s{SRDV+3}, 0x20000")
    g(f"s_mov_b32 s{SRDQ+2}, 0x200000")
    g(f"s_mov_b32 s{SRDQ+3}, 0x20000")
    g(f"s_mov_b32 s{SRDO+2}, 0x200000")
    g(f"s_mov_b32 s{SRDO+3}, 0x20000")
    g("s_waitcnt lgkmcnt(0)")
    g.stamp()
    g(f"s_mov_b32 s{SRDQ}, s{sQ}")
    g(f"s_mov_b32 s{SRDQ+1}, s{sQ+1}")
    g(f"s_add_u32 s{SRDK}, s{sK}, s{sHEAD}")
    g(f"s_addc_u32 s{SRDK+1}, s{sK+1}, 0")
    g(f"buffer_load_dwordx4 {r(Q0,4)}, v{vF}, s[{SRDQ}:{SRDQ+3}], s{sQ0OFF} offen")
    g(f"s_add_u32 s{SRDV}, s{sV}, s{sHEAD}")
    g(f"s_addc_u32 s{SRDV+1}, s{sV+1}, 0")
    g(f"buffer_load_dwordx4 {r(Q1,4)}, v{vF}, s[{SRDQ}:{SRDQ+3}], s{sQ1OFF} offen")
    def dma(i):
        g(f"s_add_u32 s{sT0}, s{sWL}, {i*4096}")
        g(f"s_add_u32 m0, s{sWL}, {L_K + i*4096}")
        g(f"s_nop 0")
        g(f"buffer_load_dwordx4 v{vF}, s[{SRDK}:{SRDK+3}], s{sT0} offen lds")
        g(f"s_add_u32 m0, s{sWL}, {L_V + i*4096}")
        g(f"s_nop 0")
        g(f"buffer_load_dwordx4 v{vL16}, s[{SRDV}:{SRDV+3}], s{sT0} offen lds")
    for i in range(8): dma(i)
    g.stamp()
    g(f"s_mov_b32 s{SRDO}, s{sO}")
    g(f"s_mov_b32 s{SRDO+1}, s{sO+1}")
    g.c("ones area: each wave writes 1 KiB")
    for i in range(4): g(f"v_mov_b32 v{vT+4+i}, 0x3f803f80")
    g(f"s_lshl_b32 s{sT0}, s{sW}, 10")
    g(f"v_add_u32 v{vT}, s{sT0}, v{vL16}")
    g(f"ds_write_b128 v{vT}, {r(vT+4,4)} offset:{L_ONES}")
    g.c("LDS addresses")
    g(f"s_lshl_b32 s{sT0}, s{sKH}, 15")
    g(f"s_add_u32 s{sT1}, s{sT0}, {L_K - 2048}")
    g(f"v_add_u32 v{vAK}, s{sT1}, v{vL16}")
    g(f"v_and_b32 v{vT}, 15, v0")
    g(f"v_lshlrev_b32 v{vT}, 3, v{vT}")
    g(f"v_bfe_u32 v{vT+1}, v0, 5, 1")
    g(f"v_lshlrev_b32 v{vT+1}, 8, v{vT+1}")
    g(f"s_add_u32 s{sT1}, s{sT0}, {L_V - 2048}")
    g(f"v_add_u32 v{vT+1}, s{sT1}, v{vT+1}")
    g(f"v_mov_b32 v{vT+2}, {L_ONES + 128}")
    g(f"v_and_b32 v{vT+3}, 16, v0")
    g(f"v_cmp_eq_u32 vcc, 0, v{vT+3}")
    g(f"v_mov_b32 v{vT+3}, 0x1000")
    g(f"v_mov_b32 v{vIDX}, 0xdddddddd")
    g(f"v_cndmask_b32 v{vT+1}, v{vT+2}, v{vT+1}, vcc")
    g(f"v_cndmask_b32 v{vINC}, 0, v{vT+3}, vcc")
    g(f"v_add_u32 v{vAV}, v{vT}, v{vT+1}")
    g(f"s_mul_i32 s{sT0}, s{sW}, {XSLOT}")
    g(f"s_xor_b32 s{sT1}, s{sW}, 4")
    g(f"s_mul_i32 s{sT1}, s{sT1}, {XSLOT}")
    g(f"s_add_u32 s{sT0}, s{sT0}, {L_X}")
    g(f"s_add_u32 s{sT1}, s{sT1}, {L_X}")
    g(f"v_lshrrev_b32 v{vT}, 2, v{vL16}")
    g(f"v_add_u32 v{vXW}, s{sT0}, v{vL16}")
    g(f"v_add_u32 v{vXR}, s{sT1}, v{vL16}")
    g(f"v_add_u32 v{vXW4}, s{sT0}, v{vT}")
    g(f"v_add_u32 v{vXR4}, s{sT1}, v{vT}")
    for i in range(16): g(f"v_mov_b32 v{ACC0+i}, 0")
    for i in range(16): g(f"v_mov_b32 v{ACC1+i}, 0")
    g(f"s_mov_b32 s{sG}, -2")
    g(f"s_mov_b32 s{sNB}, 2")
    g(f"s_mov_b32 s{sSLOW}, 0")
    g("s_waitcnt vmcnt(16)")
    g.stamp()
    scale_q(g, Q0)
    scale_q(g, Q1)
    g("s_waitcnt vmcnt(14) lgkmcnt(0)")
    g.stamp()
    g("s_barrier")
    g.stamp()
    krd(g, KF[0], 2048)
    krd(g, KF[1], 3072)
    trd(g, VA[0], 2048)
    trd(g, VA[0] + 2, 2048 + 128)
    trd(g, VB[0], 2048 + 512)
    trd(g, VB[0] + 2, 2048 + 640)
    g("s_waitcnt lgkmcnt(5)")
    qk(g, S0, KF[0], Q0)
    g("s_waitcnt lgkmcnt(0)")
    g("s_nop 10")
    exps(g, S0, 0, 2)
    g("s_branch L_entry")
    g.L.append(".p2align 6")
    g.label("L_top")
    body(g, 0)
    def t1():
        g(f"s_cmp_eq_u32 s{sG}, 30")
        g("s_cbranch_scc1 L_exit")
    body(g, 1, tail=t1)
    body(g, 2, entry="L_entry")
    def t3():
        g(f"v_add_u32 v{vAK}, 0x1000, v{vAK}")
        g(f"v_add_u32 v{vAV}, v{vINC}, v{vAV}")
        g(f"s_add_u32 s{sG}, s{sG}, 4")
        g(f"s_cmp_eq_u32 s{sG}, s{sNB}")
        g("s_cbranch_scc0 L_top")
        g(f"s_cmp_eq_u32 s{sG}, 2")
        g("s_cbranch_scc1 L_bar1")
        g("s_waitcnt vmcnt(0)")
        g.label("L_bar1")
        g("s_waitcnt vmcnt(10)")
        g("s_barrier")
        g(f"s_mov_b32 s{sNB}, 10")
        g("s_branch L_top")
    body(g, 3, tail=t3)
    g.label("L_exit")
    g.stamp()
    g(f"ds_write_b128 v{vXW}, {r(ACC0,4)}")
    g(f"ds_write_b128 v{vXW}, {r(ACC0+4,4)} offset:1024")
    g(f"ds_write_b32 v{vXW4}, v{ACC0+8} offset:2048")
    exps(g, S1, 12, 16)
    g("s_nop 1")
    smf(g, ACC1, VB[1], S1 + 8)
    g("s_waitcnt lgkmcnt(0)")
    g("s_barrier")
    g(f"ds_read_b128 {r(S0,4)}, v{vXR}")
    g(f"ds_read_b128 {r(S0+4,4)}, v{vXR} offset:1024")
    g(f"ds_read_b32 v{S0+8}, v{vXR4} offset:2048")
    g("s_nop 7")
    g("s_waitcnt lgkmcnt(0)")
    g(f"v_add_f32 v{ACC1+8}, v{ACC1+8}, v{S0+8}")
    for i in range(8): g(f"v_add_f32 v{ACC1+i}, v{ACC1+i}, v{S0+i}")
    g.label("L_fin")
    g(f"v_rcp_f32 v{vT}, v{ACC1+8}")
    g.c("range check of the row sum: 2^-40 <= l <= 2^80 (false for NaN/Inf)")
    g(f"v_cmp_le_f32 vcc, 0x2b800000, v{ACC1+8}")
    g(f"s_mov_b64 s[{sT0}:{sT0+1}], vcc")
    g(f"v_cmp_ge_f32 vcc, 0x67800000, v{ACC1+8}")
    for i in range(8): g(f"v_mul_f32 v{ACC1+i}, v{ACC1+i}, v{vT}")
    g(f"s_and_b64 s[{sT0}:{sT0+1}], s[{sT0}:{sT0+1}], vcc")
    g(f"v_add_f32 v{vT+1}, v{ACC1+0}, v{ACC1+1}")
    g(f"v_add_f32 v{vT+2}, v{ACC1+2}, v{ACC1+3}")
    g(f"v_add_f32 v{vT+3}, v{ACC1+4}, v{ACC1+5}")
    g(f"v_add_f32 v{vT+4}, v{ACC1+6}, v{ACC1+7}")
    g(f"v_add_f32 v{vT+1}, v{vT+1}, v{vT+2}")
    g(f"v_add_f32 v{vT+3}, v{vT+3}, v{vT+4}")
    g(f"v_add_f32 v{vT+1}, v{vT+1}, v{vT+3}")
    g(f"v_mov_b32 v{vT+2}, 0x1f8")
    g(f"v_cmp_class_f32 vcc, v{vT+1}, v{vT+2}")
    g(f"v_cvt_pk_bf16_f32 v{vT+4}, v{ACC1+0}, v{ACC1+1}")
    g(f"v_cvt_pk_bf16_f32 v{vT+5}, v{ACC1+2}, v{ACC1+3}")
    g(f"v_cvt_pk_bf16_f32 v{vT+6}, v{ACC1+4}, v{ACC1+5}")
    g(f"v_cvt_pk_bf16_f32 v{vT+7}, v{ACC1+6}, v{ACC1+7}")
    g(f"s_and_b64 s[{sT0}:{sT0+1}], s[{sT0}:{sT0+1}], vcc")
    if force_slow:
        g(f"s_mov_b64 s[{sT0}:{sT0+1}], 0")
    g(f"s_cmp_eq_u64 s[{sT0}:{sT0+1}], exec")
    g("s_cbranch_scc0 L_slow")
    g.label("L_store")
    g(f"v_permlane32_swap_b32 v{vT+4}, v{vT+6}")
    g(f"v_permlane32_swap_b32 v{vT+5}, v{vT+7}")
    g(f"buffer_store_dwordx4 {r(vT+4,4)}, v{vF}, s[{SRDO}:{SRDO+3}], s{sQ1OFF} offen")
    if stamps:
        g.stamp()
        g("s_waitcnt lgkmcnt(0)")
        g(f"s_lshl_b32 s{sT0}, s2, 3")
        g(f"s_add_u32 s{sT0}, s{sT0}, s{sW}")
        g(f"s_lshl_b32 s{sT0}, s{sT0}, 7")
        g(f"v_mov_b32 v{vT}, s{sT0}")
        for i in range(g.nst):
            g(f"v_mov_b32 v{vT+2}, s{sTS+2*i}")
            g(f"v_mov_b32 v{vT+3}, s{sTS+2*i+1}")
            g(f"global_store_dwordx2 v{vT}, v[{vT+2}:{vT+3}], s[42:43] offset:{8*i}")
            g("s_nop 1")
    g.label("L_end")
    g("s_endpgm")
    g.label("L_slow")
    g(f"s_cmp_lg_u32 s{sSLOW}, 0")
    g("s_cbranch_scc1 L_store")
    g(f"s_mov_b32 s{sSLOW}, 1")
    g.c("pass 1: true row max over all 2048 keys")
    g(f"v_add_u32 v{vAK}, {L_K}, v{vL16}")
    g(f"v_mov_b32 v{vT}, 0xff800000")
    g(f"s_mov_b32 s{sCNT}, 64")
    g.label("L_s1")
    krd(g, KF[0], 0)
    g("s_waitcnt lgkmcnt(0)")
    qk(g, S0, KF[0], Q1)
    g(f"v_add_u32 v{vAK}, 0x400, v{vAK}")
    g("s_nop 15")
    for i in range(8):
        g(f"v_max3_f32 v{vT}, v{vT}, v{S0+2*i}, v{S0+2*i+1}")
    g(f"s_sub_u32 s{sCNT}, s{sCNT}, 1")
    g(f"s_cmp_lg_u32 s{sCNT}, 0")
    g("s_cbranch_scc1 L_s1")
    g(f"v_mov_b32 v{vT+1}, v{vT}")
    g("s_nop 1")
    g(f"v_permlane32_swap_b32 v{vT}, v{vT+1}")
    g("s_nop 1")
    g(f"v_max_f32 v{vT}, v{vT}, v{vT+1}")
    for i in range(16): g(f"v_sub_f32 v{CB+i}, 0, v{vT}")
    for i in range(16): g(f"v_mov_b32 v{ACC1+i}, 0")
    g.c("pass 2: exp(s - max), PV and row sum")
    g(f"v_add_u32 v{vAK}, {L_K}, v{vL16}")
    g(f"v_and_b32 v{vT}, 15, v0")
    g(f"v_lshlrev_b32 v{vT}, 3, v{vT}")
    g(f"v_bfe_u32 v{vT+1}, v0, 5, 1")
    g(f"v_lshlrev_b32 v{vT+1}, 8, v{vT+1}")
    g(f"v_add_u32 v{vT+1}, {L_V}, v{vT+1}")
    g(f"v_mov_b32 v{vT+2}, {L_ONES + 128}")
    g(f"v_cmp_ne_u32 vcc, 0, v{vINC}")
    g(f"v_lshrrev_b32 v{vINC}, 2, v{vINC}")
    g("s_nop 0")
    g(f"v_cndmask_b32 v{vT+1}, v{vT+2}, v{vT+1}, vcc")
    g(f"v_add_u32 v{vAV}, v{vT}, v{vT+1}")
    g(f"s_mov_b32 s{sCNT}, 64")
    g.label("L_s2")
    krd(g, KF[0], 0)
    trd(g, VA[0], 0)
    trd(g, VA[0] + 2, 128)
    trd(g, VB[0], 512)
    trd(g, VB[0] + 2, 640)
    g("s_waitcnt lgkmcnt(0)")
    qk(g, S0, KF[0], Q1, r(CB, 16))
    g(f"v_add_u32 v{vAK}, 0x400, v{vAK}")
    g(f"v_add_u32 v{vAV}, v{vINC}, v{vAV}")
    g("s_nop 15")
    exps(g, S0, 0, 16)
    g("s_nop 1")
    smf(g, ACC1, VA[0], S0)
    smf(g, ACC1, VB[0], S0 + 8)
    g(f"s_sub_u32 s{sCNT}, s{sCNT}, 1")
    g(f"s_cmp_lg_u32 s{sCNT}, 0")
    g("s_cbranch_scc1 L_s2")
    g("s_nop 15")
    g("s_branch L_fin")
    g.L.append('.section .rodata,"a"')
    g.L.append(".p2align 6")
    g.L.append(f".amdhsa_kernel {NAME}_kernel")
    g.L.append(f"  .amdhsa_next_free_vgpr {NVGPR}")
    g.L.append(f"  .amdhsa_next_free_sgpr 96")
    g.L.append(f"  .amdhsa_accum_offset {(NVGPR+3)//4*4}")
    g.L.append("  .amdhsa_group_segment_fixed_size 0")
    g.L.append("  .amdhsa_kernarg_size 48")
    g.L.append("  .amdhsa_user_sgpr_count 2")
    g.L.append("  .amdhsa_user_sgpr_kernarg_segment_ptr 1")
    g.L.append("  .amdhsa_system_sgpr_workgroup_id_x 1")
    g.L.append(".end_amdhsa_kernel")
    return "\n".join(g.L) + "\n"

if __name__ == "__main__":
    ap = argparse.ArgumentParser()
    ap.add_argument("-o", default=f"cdna_kernels/{NAME}.s")
    ap.add_argument("--stamps", action="store_true")
    ap.add_argument("--force-slow", action="store_true")
    a = ap.parse_args()
    open(a.o, "w").write(build(a.stamps, a.force_slow))
```

```python
import sys, argparse

NAME = "standalone__fused_io_aware_attn__prompt"

HEADER = """; Kernarg layout for this problem (48 bytes, ptrs only, base s[0:1]):
"""

L_ONES = 0
L_K = 8192
L_V = L_K + 65536
L_X = L_V + 65536
XSLOT = 2304
LDS_BYTES = L_X + 8 * XSLOT

vF = 1
vL16 = 2
vAK = 3
vAV = 4
vINC = 5
vIDX = 6
vXW = 7
vXW4 = 8
vXR = 9
vXR4 = 10
vT = 12
Q0 = 20; Q1 = 24
KF = [28, 32]
VA = [36, 40]
VB = [44, 48]
S0 = 52; S1 = 68
ACC0 = 84; ACC1 = 100
CB = 116
NVGPR = 132

sQ, sK, sV, sO = 4, 6, 8, 10
SRDK, SRDV, SRDQ, SRDO = 12, 16, 20, 24
sW, sHEAD, sQB, sQP, sKH = 28, 29, 30, 31, 32
sQ1OFF, sQ0OFF, sWL, sT0, sT1 = 33, 34, 35, 36, 37
sG, sNB, sSLOW, sCNT = 38, 39, 40, 41
sTS = 44

def r(base, n): return f"v[{base}:{base+n-1}]"

class Gen:
    def __init__(self, stamps=False):
        self.L = []
        self.stamps = stamps
        self.nst = 0
    def __call__(self, s): self.L.append("    " + s)
    def label(self, s): self.L.append(s + ":")
    def c(self, s): self.L.append("    ; " + s)
    def stamp(self):
        if self.stamps:
            i = sTS + 2 * self.nst
            self(f"s_memtime s[{i}:{i+1}]")
            self.nst += 1

def exps(g, S, lo, hi):
    for i in range(lo, hi): g(f"v_exp_f32 v{S+i}, v{S+i}")

def smf(g, acc, A, B): g(f"v_smfmac_f32_32x32x32_bf16 {r(acc,16)}, {r(A,4)}, {r(B,8)}, v{vIDX}")
def qk(g, S, K, Q, C="0"): g(f"v_mfma_f32_32x32x16_bf16 {r(S,16)}, {r(K,4)}, {r(Q,4)}, {C}")
def trd(g, dst, off): g(f"ds_read_b64_tr_b16 {r(dst,2)}, v{vAV} offset:{off}")
def krd(g, dst, off): g(f"ds_read_b128 {r(dst,4)}, v{vAK} offset:{off}")

def body(g, p, entry=None, tail=None):
    f = p & 1
    vo = (p + 1) * 1024
    ko = (p + 2) * 1024
    exps(g, S1, 12, 16)
    exps(g, S0, 0, 2)
    smf(g, ACC1, VB[f ^ 1], S1 + 8)
    if entry: g.label(entry)
    trd(g, VA[f ^ 1], vo)
    exps(g, S0, 2, 7)
    qk(g, S1, KF[f], Q1)
    trd(g, VA[f ^ 1] + 2, vo + 128)
    exps(g, S0, 7, 12)
    smf(g, ACC0, VA[f], S0)
    krd(g, KF[f], ko)
    exps(g, S0, 12, 16)
    exps(g, S1, 0, 2)
    smf(g, ACC0, VB[f], S0 + 8)
    trd(g, VB[f ^ 1], vo + 512)
    exps(g, S1, 2, 7)
    qk(g, S0, KF[f ^ 1], Q0)
    trd(g, VB[f ^ 1] + 2, vo + 640)
    exps(g, S1, 7, 12)
    smf(g, ACC1, VA[f], S1)
    g("s_waitcnt lgkmcnt(0)")
    if tail: tail()

def scale_q(g, Q):
    for i in range(4):
        a, b = vT + 2 * i, vT + 2 * i + 1
        g(f"v_lshlrev_b32 v{a}, 16, v{Q+i}")
        g(f"v_and_b32 v{b}, 0xffff0000, v{Q+i}")
    for i in range(8):
        g(f"v_mul_f32 v{vT+i}, 0x3eb8aa3b, v{vT+i}")
    for i in range(4):
        g(f"v_cvt_pk_bf16_f32 v{Q+i}, v{vT+2*i}, v{vT+2*i+1}")

def build(stamps=False, force_slow=False, dbg=False):
    g = Gen(stamps)
    g.L.append(HEADER.rstrip("\n"))
    g.L.append(f"; @launch grid=(256,1,1) block=(512,1,1) lds={LDS_BYTES}")
    g.L.append('.amdgcn_target "amdgcn-amd-amdhsa--gfx950"')
    g.L.append(".text")
    g.L.append(f".globl {NAME}_kernel")
    g.L.append(".p2align 8")
    g.L.append(f".type {NAME}_kernel,@function")
    g.label(f"{NAME}_kernel")
    g("s_cmp_ge_u32 s2, 256")
    g("s_cbranch_scc1 L_end")
    g("s_load_dwordx8 s[4:11], s[0:1], 0")
    if stamps:
        g(f"s_load_dwordx2 s[42:43], s[0:1], {32 if dbg else 40}")
        g("s_memrealtime s[80:81]")
    g.stamp()
    g(f"v_lshrrev_b32 v{vT}, 6, v0")
    g(f"v_and_b32 v{vT+1}, 31, v0")
    g(f"v_readfirstlane_b32 s{sW}, v{vT}")
    g(f"v_and_b32 v{vT+2}, 63, v0")
    g(f"v_lshlrev_b32 v{vT+1}, 5, v{vT+1}")
    g(f"v_bfe_u32 v{vT+3}, v0, 5, 1")
    g(f"v_lshl_add_u32 v{vF}, v{vT+3}, 4, v{vT+1}")
    g(f"v_lshlrev_b32 v{vL16}, 4, v{vT+2}")
    g.c("scalar decode: head = (wg&7)*4 + (wg>>6), qblock = (wg>>3)&7")
    g(f"s_and_b32 s{sHEAD}, s2, 7")
    g(f"s_lshr_b32 s{sT0}, s2, 6")
    g(f"s_lshl_b32 s{sHEAD}, s{sHEAD}, 2")
    g(f"s_add_u32 s{sHEAD}, s{sHEAD}, s{sT0}")
    g(f"s_lshl_b32 s{sHEAD}, s{sHEAD}, 16")
    g(f"s_bfe_u32 s{sQB}, s2, 0x30003")
    g(f"s_lshl_b32 s{sQB}, s{sQB}, 13")
    g(f"s_add_u32 s{sQB}, s{sQB}, s{sHEAD}")
    g(f"s_and_b32 s{sQP}, s{sW}, 3")
    g(f"s_lshr_b32 s{sKH}, s{sW}, 2")
    g(f"s_lshl_b32 s{sT0}, s{sQP}, 11")
    g(f"s_add_u32 s{sT0}, s{sT0}, s{sQB}")
    g(f"s_lshl_b32 s{sT1}, s{sKH}, 10")
    g(f"s_add_u32 s{sQ1OFF}, s{sT0}, s{sT1}")
    g(f"s_xor_b32 s{sT1}, s{sT1}, 1024")
    g(f"s_add_u32 s{sQ0OFF}, s{sT0}, s{sT1}")
    g(f"s_lshl_b32 s{sWL}, s{sKH}, 15")
    g(f"s_lshl_b32 s{sT0}, s{sQP}, 10")
    g(f"s_add_u32 s{sWL}, s{sWL}, s{sT0}")
    g(f"s_mov_b32 s{SRDK+2}, 0x10000")
    g(f"s_mov_b32 s{SRDK+3}, 0x20000")
    g(f"s_mov_b32 s{SRDV+2}, 0x10000")
    g(f"s_mov_b32 s{SRDV+3}, 0x20000")
    g(f"s_mov_b32 s{SRDQ+2}, 0x200000")
    g(f"s_mov_b32 s{SRDQ+3}, 0x20000")
    g(f"s_mov_b32 s{SRDO+2}, 0x200000")
    g(f"s_mov_b32 s{SRDO+3}, 0x20000")
    g("s_waitcnt lgkmcnt(0)")
    g.stamp()
    g(f"s_mov_b32 s{SRDQ}, s{sQ}")
    g(f"s_mov_b32 s{SRDQ+1}, s{sQ+1}")
    g(f"s_add_u32 s{SRDK}, s{sK}, s{sHEAD}")
    g(f"s_addc_u32 s{SRDK+1}, s{sK+1}, 0")
    g(f"buffer_load_dwordx4 {r(Q0,4)}, v{vF}, s[{SRDQ}:{SRDQ+3}], s{sQ0OFF} offen")
    g(f"s_add_u32 s{SRDV}, s{sV}, s{sHEAD}")
    g(f"s_addc_u32 s{SRDV+1}, s{sV+1}, 0")
    g(f"buffer_load_dwordx4 {r(Q1,4)}, v{vF}, s[{SRDQ}:{SRDQ+3}], s{sQ1OFF} offen")
    def dma(i):
        g(f"s_add_u32 s{sT0}, s{sWL}, {i*4096}")
        g(f"s_add_u32 m0, s{sWL}, {L_K + i*4096}")
        g(f"s_nop 0")
        g(f"buffer_load_dwordx4 v{vF}, s[{SRDK}:{SRDK+3}], s{sT0} offen lds")
        g(f"s_add_u32 m0, s{sWL}, {L_V + i*4096}")
        g(f"s_nop 0")
        g(f"buffer_load_dwordx4 v{vL16}, s[{SRDV}:{SRDV+3}], s{sT0} offen lds")
    for i in range(8): dma(i)
    g.stamp()
    g(f"s_mov_b32 s{SRDO}, s{sO}")
    g(f"s_mov_b32 s{SRDO+1}, s{sO+1}")
    g.c("ones area: each wave writes 1 KiB")
    for i in range(4): g(f"v_mov_b32 v{vT+4+i}, 0x3f803f80")
    g(f"s_lshl_b32 s{sT0}, s{sW}, 10")
    g(f"v_add_u32 v{vT}, s{sT0}, v{vL16}")
    g(f"ds_write_b128 v{vT}, {r(vT+4,4)} offset:{L_ONES}")
    g.c("LDS addresses")
    g(f"s_lshl_b32 s{sT0}, s{sKH}, 15")
    g(f"s_add_u32 s{sT1}, s{sT0}, {L_K - 2048}")
    g(f"v_add_u32 v{vAK}, s{sT1}, v{vL16}")
    g(f"v_and_b32 v{vT}, 15, v0")
    g(f"v_lshlrev_b32 v{vT}, 3, v{vT}")
    g(f"v_bfe_u32 v{vT+1}, v0, 5, 1")
    g(f"v_lshlrev_b32 v{vT+1}, 8, v{vT+1}")
    g(f"s_add_u32 s{sT1}, s{sT0}, {L_V - 2048}")
    g(f"v_add_u32 v{vT+1}, s{sT1}, v{vT+1}")
    g(f"v_mov_b32 v{vT+2}, {L_ONES + 128}")
    g(f"v_and_b32 v{vT+3}, 16, v0")
    g(f"v_cmp_eq_u32 vcc, 0, v{vT+3}")
    g(f"v_mov_b32 v{vT+3}, 0x1000")
    g(f"v_mov_b32 v{vIDX}, 0xdddddddd")
    g(f"v_cndmask_b32 v{vT+1}, v{vT+2}, v{vT+1}, vcc")
    g(f"v_cndmask_b32 v{vINC}, 0, v{vT+3}, vcc")
    g(f"v_add_u32 v{vAV}, v{vT}, v{vT+1}")
    g(f"s_mul_i32 s{sT0}, s{sW}, {XSLOT}")
    g(f"s_xor_b32 s{sT1}, s{sW}, 4")
    g(f"s_mul_i32 s{sT1}, s{sT1}, {XSLOT}")
    g(f"s_add_u32 s{sT0}, s{sT0}, {L_X}")
    g(f"s_add_u32 s{sT1}, s{sT1}, {L_X}")
    g(f"v_lshrrev_b32 v{vT}, 2, v{vL16}")
    g(f"v_add_u32 v{vXW}, s{sT0}, v{vL16}")
    g(f"v_add_u32 v{vXR}, s{sT1}, v{vL16}")
    g(f"v_add_u32 v{vXW4}, s{sT0}, v{vT}")
    g(f"v_add_u32 v{vXR4}, s{sT1}, v{vT}")
    for i in range(16): g(f"v_mov_b32 v{ACC0+i}, 0")
    for i in range(16): g(f"v_mov_b32 v{ACC1+i}, 0")
    g(f"s_mov_b32 s{sG}, -2")
    g(f"s_mov_b32 s{sNB}, 2")
    g(f"s_mov_b32 s{sSLOW}, 0")
    g("s_waitcnt vmcnt(16)")
    g.stamp()
    scale_q(g, Q0)
    scale_q(g, Q1)
    g("s_waitcnt vmcnt(14) lgkmcnt(0)")
    g.stamp()
    g("s_barrier")
    g.stamp()
    krd(g, KF[0], 2048)
    krd(g, KF[1], 3072)
    trd(g, VA[0], 2048)
    trd(g, VA[0] + 2, 2048 + 128)
    trd(g, VB[0], 2048 + 512)
    trd(g, VB[0] + 2, 2048 + 640)
    g("s_waitcnt lgkmcnt(5)")
    qk(g, S0, KF[0], Q0)
    g("s_waitcnt lgkmcnt(0)")
    g("s_nop 10")
    exps(g, S0, 0, 2)
    g("s_branch L_entry")
    g.L.append(".p2align 6")
    g.label("L_top")
    body(g, 0)
    def t1():
        g(f"s_cmp_eq_u32 s{sG}, 30")
        g("s_cbranch_scc1 L_exit")
    body(g, 1, tail=t1)
    body(g, 2, entry="L_entry")
    def t3():
        g(f"v_add_u32 v{vAK}, 0x1000, v{vAK}")
        g(f"v_add_u32 v{vAV}, v{vINC}, v{vAV}")
        g(f"s_add_u32 s{sG}, s{sG}, 4")
        g(f"s_cmp_eq_u32 s{sG}, s{sNB}")
        g("s_cbranch_scc0 L_top")
        g(f"s_cmp_eq_u32 s{sG}, 2")
        g("s_cbranch_scc1 L_bar1")
        g("s_waitcnt vmcnt(0)")
        g.label("L_bar1")
        g("s_waitcnt vmcnt(10)")
        g("s_barrier")
        g(f"s_mov_b32 s{sNB}, 10")
        g("s_branch L_top")
    body(g, 3, tail=t3)
    g.label("L_exit")
    g.stamp()
    g(f"ds_write_b128 v{vXW}, {r(ACC0,4)}")
    g(f"ds_write_b128 v{vXW}, {r(ACC0+4,4)} offset:1024")
    g(f"ds_write_b32 v{vXW4}, v{ACC0+8} offset:2048")
    exps(g, S1, 12, 16)
    g("s_nop 1")
    smf(g, ACC1, VB[1], S1 + 8)
    g("s_waitcnt lgkmcnt(0)")
    g("s_barrier")
    g(f"ds_read_b128 {r(S0,4)}, v{vXR}")
    g(f"ds_read_b128 {r(S0+4,4)}, v{vXR} offset:1024")
    g(f"ds_read_b32 v{S0+8}, v{vXR4} offset:2048")
    g("s_nop 7")
    g("s_waitcnt lgkmcnt(0)")
    g(f"v_add_f32 v{ACC1+8}, v{ACC1+8}, v{S0+8}")
    for i in range(8): g(f"v_add_f32 v{ACC1+i}, v{ACC1+i}, v{S0+i}")
    g.label("L_fin")
    g(f"v_rcp_f32 v{vT}, v{ACC1+8}")
    g.c("range check of the row sum: 2^-40 <= l <= 2^80 (false for NaN/Inf)")
    g(f"v_cmp_le_f32 vcc, 0x2b800000, v{ACC1+8}")
    g(f"s_mov_b64 s[{sT0}:{sT0+1}], vcc")
    g(f"v_cmp_ge_f32 vcc, 0x67800000, v{ACC1+8}")
    for i in range(8): g(f"v_mul_f32 v{ACC1+i}, v{ACC1+i}, v{vT}")
    g(f"s_and_b64 s[{sT0}:{sT0+1}], s[{sT0}:{sT0+1}], vcc")
    g(f"v_add_f32 v{vT+1}, v{ACC1+0}, v{ACC1+1}")
    g(f"v_add_f32 v{vT+2}, v{ACC1+2}, v{ACC1+3}")
    g(f"v_add_f32 v{vT+3}, v{ACC1+4}, v{ACC1+5}")
    g(f"v_add_f32 v{vT+4}, v{ACC1+6}, v{ACC1+7}")
    g(f"v_add_f32 v{vT+1}, v{vT+1}, v{vT+2}")
    g(f"v_add_f32 v{vT+3}, v{vT+3}, v{vT+4}")
    g(f"v_add_f32 v{vT+1}, v{vT+1}, v{vT+3}")
    g(f"v_mov_b32 v{vT+2}, 0x1f8")
    g(f"v_cmp_class_f32 vcc, v{vT+1}, v{vT+2}")
    g(f"v_cvt_pk_bf16_f32 v{vT+4}, v{ACC1+0}, v{ACC1+1}")
    g(f"v_cvt_pk_bf16_f32 v{vT+5}, v{ACC1+2}, v{ACC1+3}")
    g(f"v_cvt_pk_bf16_f32 v{vT+6}, v{ACC1+4}, v{ACC1+5}")
    g(f"v_cvt_pk_bf16_f32 v{vT+7}, v{ACC1+6}, v{ACC1+7}")
    g(f"s_and_b64 s[{sT0}:{sT0+1}], s[{sT0}:{sT0+1}], vcc")
    if force_slow:
        g(f"s_mov_b64 s[{sT0}:{sT0+1}], 0")
    g(f"s_cmp_eq_u64 s[{sT0}:{sT0+1}], exec")
    g("s_cbranch_scc0 L_slow")
    g.label("L_store")
    g(f"v_permlane32_swap_b32 v{vT+4}, v{vT+6}")
    g(f"v_permlane32_swap_b32 v{vT+5}, v{vT+7}")
    g(f"buffer_store_dwordx4 {r(vT+4,4)}, v{vF}, s[{SRDO}:{SRDO+3}], s{sQ1OFF} offen")
    if stamps:
        g.stamp()
        g("s_memrealtime s[82:83]")
        g("s_waitcnt lgkmcnt(0)")
        if dbg:
            g("s_cmp_lg_u32 s2, 5")
            g("s_cbranch_scc1 L_end")
            g(f"s_cmp_lg_u32 s{sW}, 7")
            g("s_cbranch_scc1 L_end")
            g(f"v_mov_b32 v{vT}, 0")
            for i in range(g.nst):
                g(f"s_sub_u32 s{sT0}, s{sTS+2*i}, s{sTS}")
                g(f"v_mov_b32 v{vT+2}, s{sT0}")
                g(f"global_store_dword v{vT}, v{vT+2}, s[42:43] offset:{4*i}")
                g("s_nop 1")
            g(f"s_sub_u32 s{sT0}, s82, s80")
            g(f"v_mov_b32 v{vT+2}, s{sT0}")
            g(f"global_store_dword v{vT}, v{vT+2}, s[42:43] offset:{4*g.nst}")
            g("s_endpgm")
        g(f"s_mov_b32 s{sTS+2*g.nst}, s80")
        g(f"s_mov_b32 s{sTS+2*g.nst+1}, s81")
        g(f"s_mov_b32 s{sTS+2*g.nst+2}, s82")
        g(f"s_mov_b32 s{sTS+2*g.nst+3}, s83")
        g.nst += 2
        g(f"s_lshl_b32 s{sT0}, s2, 3")
        g(f"s_add_u32 s{sT0}, s{sT0}, s{sW}")
        g(f"s_lshl_b32 s{sT0}, s{sT0}, 7")
        g(f"v_mov_b32 v{vT}, s{sT0}")
        for i in range(g.nst):
            g(f"v_mov_b32 v{vT+2}, s{sTS+2*i}")
            g(f"v_mov_b32 v{vT+3}, s{sTS+2*i+1}")
            g(f"global_store_dwordx2 v{vT}, v[{vT+2}:{vT+3}], s[42:43] offset:{8*i}")
            g("s_nop 1")
    g.label("L_end")
    g("s_endpgm")
    g.label("L_slow")
    g(f"s_cmp_lg_u32 s{sSLOW}, 0")
    g("s_cbranch_scc1 L_store")
    g(f"s_mov_b32 s{sSLOW}, 1")
    g.c("pass 1: true row max over all 2048 keys")
    g(f"v_add_u32 v{vAK}, {L_K}, v{vL16}")
    g(f"v_mov_b32 v{vT}, 0xff800000")
    g(f"s_mov_b32 s{sCNT}, 64")
    g.label("L_s1")
    krd(g, KF[0], 0)
    g("s_waitcnt lgkmcnt(0)")
    qk(g, S0, KF[0], Q1)
    g(f"v_add_u32 v{vAK}, 0x400, v{vAK}")
    g("s_nop 15")
    for i in range(8):
        g(f"v_max3_f32 v{vT}, v{vT}, v{S0+2*i}, v{S0+2*i+1}")
    g(f"s_sub_u32 s{sCNT}, s{sCNT}, 1")
    g(f"s_cmp_lg_u32 s{sCNT}, 0")
    g("s_cbranch_scc1 L_s1")
    g(f"v_mov_b32 v{vT+1}, v{vT}")
    g("s_nop 1")
    g(f"v_permlane32_swap_b32 v{vT}, v{vT+1}")
    g("s_nop 1")
    g(f"v_max_f32 v{vT}, v{vT}, v{vT+1}")
    for i in range(16): g(f"v_sub_f32 v{CB+i}, 0, v{vT}")
    for i in range(16): g(f"v_mov_b32 v{ACC1+i}, 0")
    g.c("pass 2: exp(s - max), PV and row sum")
    g(f"v_add_u32 v{vAK}, {L_K}, v{vL16}")
    g(f"v_and_b32 v{vT}, 15, v0")
    g(f"v_lshlrev_b32 v{vT}, 3, v{vT}")
    g(f"v_bfe_u32 v{vT+1}, v0, 5, 1")
    g(f"v_lshlrev_b32 v{vT+1}, 8, v{vT+1}")
    g(f"v_add_u32 v{vT+1}, {L_V}, v{vT+1}")
    g(f"v_mov_b32 v{vT+2}, {L_ONES + 128}")
    g(f"v_cmp_ne_u32 vcc, 0, v{vINC}")
    g(f"v_lshrrev_b32 v{vINC}, 2, v{vINC}")
    g("s_nop 0")
    g(f"v_cndmask_b32 v{vT+1}, v{vT+2}, v{vT+1}, vcc")
    g(f"v_add_u32 v{vAV}, v{vT}, v{vT+1}")
    g(f"s_mov_b32 s{sCNT}, 64")
    g.label("L_s2")
    krd(g, KF[0], 0)
    trd(g, VA[0], 0)
    trd(g, VA[0] + 2, 128)
    trd(g, VB[0], 512)
    trd(g, VB[0] + 2, 640)
    g("s_waitcnt lgkmcnt(0)")
    qk(g, S0, KF[0], Q1, r(CB, 16))
    g(f"v_add_u32 v{vAK}, 0x400, v{vAK}")
    g(f"v_add_u32 v{vAV}, v{vINC}, v{vAV}")
    g("s_nop 15")
    exps(g, S0, 0, 16)
    g("s_nop 1")
    smf(g, ACC1, VA[0], S0)
    smf(g, ACC1, VB[0], S0 + 8)
    g(f"s_sub_u32 s{sCNT}, s{sCNT}, 1")
    g(f"s_cmp_lg_u32 s{sCNT}, 0")
    g("s_cbranch_scc1 L_s2")
    g("s_nop 15")
    g("s_branch L_fin")
    g.L.append('.section .rodata,"a"')
    g.L.append(".p2align 6")
    g.L.append(f".amdhsa_kernel {NAME}_kernel")
    g.L.append(f"  .amdhsa_next_free_vgpr {NVGPR}")
    g.L.append(f"  .amdhsa_next_free_sgpr 96")
    g.L.append(f"  .amdhsa_accum_offset {(NVGPR+3)//4*4}")
    g.L.append("  .amdhsa_group_segment_fixed_size 0")
    g.L.append("  .amdhsa_kernarg_size 48")
    g.L.append("  .amdhsa_user_sgpr_count 2")
    g.L.append("  .amdhsa_user_sgpr_kernarg_segment_ptr 1")
    g.L.append("  .amdhsa_system_sgpr_workgroup_id_x 1")
    g.L.append(".end_amdhsa_kernel")
    return "\n".join(g.L) + "\n"

if __name__ == "__main__":
    ap = argparse.ArgumentParser()
    ap.add_argument("-o", default=f"cdna_kernels/{NAME}.s")
    ap.add_argument("--stamps", action="store_true")
    ap.add_argument("--force-slow", action="store_true")
    ap.add_argument("--dbg", action="store_true")
    a = ap.parse_args()
    open(a.o, "w").write(build(a.stamps or a.dbg, a.force_slow, a.dbg))
```

```python
import sys, argparse

NAME = "standalone__fused_io_aware_attn__prompt"

HEADER = """; Kernarg layout for this problem (48 bytes, ptrs only, base s[0:1]):
"""

L_ONES = 0
L_K = 8192
L_V = L_K + 65536
L_X = L_V + 65536
XSLOT = 2304
LDS_BYTES = L_X + 8 * XSLOT

vF = 1
vL16 = 2
vAK = 3
vAV = 4
vINC = 5
vIDX = 6
vXW = 7
vXW4 = 8
vXR = 9
vXR4 = 10
vT = 12
Q0 = 20; Q1 = 24
KF = [28, 32]
VA = [36, 40]
VB = [44, 48]
S0 = 52; S1 = 68
ACC0 = 84; ACC1 = 100
CB = 116
NVGPR = 132

sQ, sK, sV, sO = 4, 6, 8, 10
SRDK, SRDV, SRDQ, SRDO = 12, 16, 20, 24
sW, sHEAD, sQB, sQP, sKH = 28, 29, 30, 31, 32
sQ1OFF, sQ0OFF, sWL, sT0, sT1 = 33, 34, 35, 36, 37
sG, sNB, sSLOW, sCNT = 38, 39, 40, 41
sTS = 44

def r(base, n): return f"v[{base}:{base+n-1}]"

class Gen:
    def __init__(self, stamps=False):
        self.L = []
        self.stamps = stamps
        self.nst = 0
    def __call__(self, s): self.L.append("    " + s)
    def label(self, s): self.L.append(s + ":")
    def c(self, s): self.L.append("    ; " + s)
    def stamp(self):
        if self.stamps:
            i = sTS + 2 * self.nst
            self(f"s_memtime s[{i}:{i+1}]")
            self.nst += 1

def exps(g, S, lo, hi):
    for i in range(lo, hi): g(f"v_exp_f32 v{S+i}, v{S+i}")

def smf(g, acc, A, B): g(f"v_smfmac_f32_32x32x32_bf16 {r(acc,16)}, {r(A,4)}, {r(B,8)}, v{vIDX}")
def qk(g, S, K, Q, C="0"): g(f"v_mfma_f32_32x32x16_bf16 {r(S,16)}, {r(K,4)}, {r(Q,4)}, {C}")
def trd(g, dst, off): g(f"ds_read_b64_tr_b16 {r(dst,2)}, v{vAV} offset:{off}")
def krd(g, dst, off): g(f"ds_read_b128 {r(dst,4)}, v{vAK} offset:{off}")

def body(g, p, entry=None, tail=None):
    f = p & 1
    vo = (p + 1) * 1024
    ko = (p + 2) * 1024
    exps(g, S1, 12, 16)
    exps(g, S0, 0, 2)
    smf(g, ACC1, VB[f ^ 1], S1 + 8)
    if entry: g.label(entry)
    trd(g, VA[f ^ 1], vo)
    exps(g, S0, 2, 7)
    qk(g, S1, KF[f], Q1)
    trd(g, VA[f ^ 1] + 2, vo + 128)
    exps(g, S0, 7, 12)
    smf(g, ACC0, VA[f], S0)
    krd(g, KF[f], ko)
    exps(g, S0, 12, 16)
    exps(g, S1, 0, 2)
    smf(g, ACC0, VB[f], S0 + 8)
    trd(g, VB[f ^ 1], vo + 512)
    exps(g, S1, 2, 7)
    qk(g, S0, KF[f ^ 1], Q0)
    trd(g, VB[f ^ 1] + 2, vo + 640)
    exps(g, S1, 7, 12)
    smf(g, ACC1, VA[f], S1)
    g("s_waitcnt lgkmcnt(0)")
    if tail: tail()

def scale_q(g, Q):
    for i in range(4):
        a, b = vT + 2 * i, vT + 2 * i + 1
        g(f"v_lshlrev_b32 v{a}, 16, v{Q+i}")
        g(f"v_and_b32 v{b}, 0xffff0000, v{Q+i}")
    for i in range(8):
        g(f"v_mul_f32 v{vT+i}, 0x3eb8aa3b, v{vT+i}")
    for i in range(4):
        g(f"v_cvt_pk_bf16_f32 v{Q+i}, v{vT+2*i}, v{vT+2*i+1}")

def build(stamps=False, force_slow=False, dbg=False):
    g = Gen(stamps)
    g.L.append(HEADER.rstrip("\n"))
    g.L.append(f"; @launch grid=(256,1,1) block=(512,1,1) lds={LDS_BYTES}")
    g.L.append('.amdgcn_target "amdgcn-amd-amdhsa--gfx950"')
    g.L.append(".text")
    g.L.append(f".globl {NAME}_kernel")
    g.L.append(".p2align 8")
    g.L.append(f".type {NAME}_kernel,@function")
    g.label(f"{NAME}_kernel")
    g("s_cmp_ge_u32 s2, 256")
    g("s_cbranch_scc1 L_end")
    g("s_load_dwordx8 s[4:11], s[0:1], 0")
    if stamps:
        g(f"s_load_dwordx2 s[42:43], s[0:1], {32 if dbg else 40}")
        g("s_memrealtime s[90:91]")
    g.stamp()
    g(f"v_lshrrev_b32 v{vT}, 6, v0")
    g(f"v_and_b32 v{vT+1}, 31, v0")
    g(f"v_readfirstlane_b32 s{sW}, v{vT}")
    g(f"v_and_b32 v{vT+2}, 63, v0")
    g(f"v_lshlrev_b32 v{vT+1}, 5, v{vT+1}")
    g(f"v_bfe_u32 v{vT+3}, v0, 5, 1")
    g(f"v_lshl_add_u32 v{vF}, v{vT+3}, 4, v{vT+1}")
    g(f"v_lshlrev_b32 v{vL16}, 4, v{vT+2}")
    g.c("scalar decode: head = (wg&7)*4 + (wg>>6), qblock = (wg>>3)&7")
    g(f"s_and_b32 s{sHEAD}, s2, 7")
    g(f"s_lshr_b32 s{sT0}, s2, 6")
    g(f"s_lshl_b32 s{sHEAD}, s{sHEAD}, 2")
    g(f"s_add_u32 s{sHEAD}, s{sHEAD}, s{sT0}")
    g(f"s_lshl_b32 s{sHEAD}, s{sHEAD}, 16")
    g(f"s_bfe_u32 s{sQB}, s2, 0x30003")
    g(f"s_lshl_b32 s{sQB}, s{sQB}, 13")
    g(f"s_add_u32 s{sQB}, s{sQB}, s{sHEAD}")
    g(f"s_and_b32 s{sQP}, s{sW}, 3")
    g(f"s_lshr_b32 s{sKH}, s{sW}, 2")
    g(f"s_lshl_b32 s{sT0}, s{sQP}, 11")
    g(f"s_add_u32 s{sT0}, s{sT0}, s{sQB}")
    g(f"s_lshl_b32 s{sT1}, s{sKH}, 10")
    g(f"s_add_u32 s{sQ1OFF}, s{sT0}, s{sT1}")
    g(f"s_xor_b32 s{sT1}, s{sT1}, 1024")
    g(f"s_add_u32 s{sQ0OFF}, s{sT0}, s{sT1}")
    g(f"s_lshl_b32 s{sWL}, s{sKH}, 15")
    g(f"s_lshl_b32 s{sT0}, s{sQP}, 10")
    g(f"s_add_u32 s{sWL}, s{sWL}, s{sT0}")
    g(f"s_mov_b32 s{SRDK+2}, 0x10000")
    g(f"s_mov_b32 s{SRDK+3}, 0x20000")
    g(f"s_mov_b32 s{SRDV+2}, 0x10000")
    g(f"s_mov_b32 s{SRDV+3}, 0x20000")
    g(f"s_mov_b32 s{SRDQ+2}, 0x200000")
    g(f"s_mov_b32 s{SRDQ+3}, 0x20000")
    g(f"s_mov_b32 s{SRDO+2}, 0x200000")
    g(f"s_mov_b32 s{SRDO+3}, 0x20000")
    g("s_waitcnt lgkmcnt(0)")
    g.stamp()
    g(f"s_mov_b32 s{SRDQ}, s{sQ}")
    g(f"s_mov_b32 s{SRDQ+1}, s{sQ+1}")
    g(f"s_add_u32 s{SRDK}, s{sK}, s{sHEAD}")
    g(f"s_addc_u32 s{SRDK+1}, s{sK+1}, 0")
    g(f"buffer_load_dwordx4 {r(Q0,4)}, v{vF}, s[{SRDQ}:{SRDQ+3}], s{sQ0OFF} offen")
    g(f"s_add_u32 s{SRDV}, s{sV}, s{sHEAD}")
    g(f"s_addc_u32 s{SRDV+1}, s{sV+1}, 0")
    g(f"buffer_load_dwordx4 {r(Q1,4)}, v{vF}, s[{SRDQ}:{SRDQ+3}], s{sQ1OFF} offen")
    def dma(i):
        g(f"s_add_u32 s{sT0}, s{sWL}, {i*4096}")
        g(f"s_add_u32 m0, s{sWL}, {L_K + i*4096}")
        g(f"s_nop 0")
        g(f"buffer_load_dwordx4 v{vF}, s[{SRDK}:{SRDK+3}], s{sT0} offen lds")
        g(f"s_add_u32 m0, s{sWL}, {L_V + i*4096}")
        g(f"s_nop 0")
        g(f"buffer_load_dwordx4 v{vL16}, s[{SRDV}:{SRDV+3}], s{sT0} offen lds")
    for i in range(8):
        dma(i)
        if i in (0, 1, 2, 3, 5, 7): g.stamp()
    g(f"s_mov_b32 s{SRDO}, s{sO}")
    g(f"s_mov_b32 s{SRDO+1}, s{sO+1}")
    g.c("ones area: each wave writes 1 KiB")
    for i in range(4): g(f"v_mov_b32 v{vT+4+i}, 0x3f803f80")
    g(f"s_lshl_b32 s{sT0}, s{sW}, 10")
    g(f"v_add_u32 v{vT}, s{sT0}, v{vL16}")
    g(f"ds_write_b128 v{vT}, {r(vT+4,4)} offset:{L_ONES}")
    g.c("LDS addresses")
    g(f"s_lshl_b32 s{sT0}, s{sKH}, 15")
    g(f"s_add_u32 s{sT1}, s{sT0}, {L_K - 2048}")
    g(f"v_add_u32 v{vAK}, s{sT1}, v{vL16}")
    g(f"v_and_b32 v{vT}, 15, v0")
    g(f"v_lshlrev_b32 v{vT}, 3, v{vT}")
    g(f"v_bfe_u32 v{vT+1}, v0, 5, 1")
    g(f"v_lshlrev_b32 v{vT+1}, 8, v{vT+1}")
    g(f"s_add_u32 s{sT1}, s{sT0}, {L_V - 2048}")
    g(f"v_add_u32 v{vT+1}, s{sT1}, v{vT+1}")
    g(f"v_mov_b32 v{vT+2}, {L_ONES + 128}")
    g(f"v_and_b32 v{vT+3}, 16, v0")
    g(f"v_cmp_eq_u32 vcc, 0, v{vT+3}")
    g(f"v_mov_b32 v{vT+3}, 0x1000")
    g(f"v_mov_b32 v{vIDX}, 0xdddddddd")
    g(f"v_cndmask_b32 v{vT+1}, v{vT+2}, v{vT+1}, vcc")
    g(f"v_cndmask_b32 v{vINC}, 0, v{vT+3}, vcc")
    g(f"v_add_u32 v{vAV}, v{vT}, v{vT+1}")
    g(f"s_mul_i32 s{sT0}, s{sW}, {XSLOT}")
    g(f"s_xor_b32 s{sT1}, s{sW}, 4")
    g(f"s_mul_i32 s{sT1}, s{sT1}, {XSLOT}")
    g(f"s_add_u32 s{sT0}, s{sT0}, {L_X}")
    g(f"s_add_u32 s{sT1}, s{sT1}, {L_X}")
    g(f"v_lshrrev_b32 v{vT}, 2, v{vL16}")
    g(f"v_add_u32 v{vXW}, s{sT0}, v{vL16}")
    g(f"v_add_u32 v{vXR}, s{sT1}, v{vL16}")
    g(f"v_add_u32 v{vXW4}, s{sT0}, v{vT}")
    g(f"v_add_u32 v{vXR4}, s{sT1}, v{vT}")
    for i in range(16): g(f"v_mov_b32 v{ACC0+i}, 0")
    for i in range(16): g(f"v_mov_b32 v{ACC1+i}, 0")
    g(f"s_mov_b32 s{sG}, -2")
    g(f"s_mov_b32 s{sNB}, 2")
    g(f"s_mov_b32 s{sSLOW}, 0")
    g("s_waitcnt vmcnt(16)")
    g.stamp()
    scale_q(g, Q0)
    scale_q(g, Q1)
    g("s_waitcnt vmcnt(14) lgkmcnt(0)")
    g.stamp()
    g("s_barrier")
    g.stamp()
    krd(g, KF[0], 2048)
    krd(g, KF[1], 3072)
    trd(g, VA[0], 2048)
    trd(g, VA[0] + 2, 2048 + 128)
    trd(g, VB[0], 2048 + 512)
    trd(g, VB[0] + 2, 2048 + 640)
    g("s_waitcnt lgkmcnt(5)")
    qk(g, S0, KF[0], Q0)
    g("s_waitcnt lgkmcnt(0)")
    g("s_nop 10")
    exps(g, S0, 0, 2)
    g("s_branch L_entry")
    g.L.append(".p2align 6")
    g.label("L_top")
    body(g, 0)
    def t1():
        g(f"s_cmp_eq_u32 s{sG}, 30")
        g("s_cbranch_scc1 L_exit")
    body(g, 1, tail=t1)
    body(g, 2, entry="L_entry")
    def t3():
        g(f"v_add_u32 v{vAK}, 0x1000, v{vAK}")
        g(f"v_add_u32 v{vAV}, v{vINC}, v{vAV}")
        g(f"s_add_u32 s{sG}, s{sG}, 4")
        g(f"s_cmp_eq_u32 s{sG}, s{sNB}")
        g("s_cbranch_scc0 L_top")
        g(f"s_cmp_eq_u32 s{sG}, 2")
        g("s_cbranch_scc1 L_bar1")
        g("s_waitcnt vmcnt(0)")
        g.label("L_bar1")
        g("s_waitcnt vmcnt(10)")
        g("s_barrier")
        g(f"s_mov_b32 s{sNB}, 10")
        g("s_branch L_top")
    body(g, 3, tail=t3)
    g.label("L_exit")
    g.stamp()
    g(f"ds_write_b128 v{vXW}, {r(ACC0,4)}")
    g(f"ds_write_b128 v{vXW}, {r(ACC0+4,4)} offset:1024")
    g(f"ds_write_b32 v{vXW4}, v{ACC0+8} offset:2048")
    exps(g, S1, 12, 16)
    g("s_nop 1")
    smf(g, ACC1, VB[1], S1 + 8)
    g("s_waitcnt lgkmcnt(0)")
    g("s_barrier")
    g(f"ds_read_b128 {r(S0,4)}, v{vXR}")
    g(f"ds_read_b128 {r(S0+4,4)}, v{vXR} offset:1024")
    g(f"ds_read_b32 v{S0+8}, v{vXR4} offset:2048")
    g("s_nop 7")
    g("s_waitcnt lgkmcnt(0)")
    g(f"v_add_f32 v{ACC1+8}, v{ACC1+8}, v{S0+8}")
    for i in range(8): g(f"v_add_f32 v{ACC1+i}, v{ACC1+i}, v{S0+i}")
    g.label("L_fin")
    g(f"v_rcp_f32 v{vT}, v{ACC1+8}")
    g.c("range check of the row sum: 2^-40 <= l <= 2^80 (false for NaN/Inf)")
    g(f"v_cmp_le_f32 vcc, 0x2b800000, v{ACC1+8}")
    g(f"s_mov_b64 s[{sT0}:{sT0+1}], vcc")
    g(f"v_cmp_ge_f32 vcc, 0x67800000, v{ACC1+8}")
    for i in range(8): g(f"v_mul_f32 v{ACC1+i}, v{ACC1+i}, v{vT}")
    g(f"s_and_b64 s[{sT0}:{sT0+1}], s[{sT0}:{sT0+1}], vcc")
    g(f"v_add_f32 v{vT+1}, v{ACC1+0}, v{ACC1+1}")
    g(f"v_add_f32 v{vT+2}, v{ACC1+2}, v{ACC1+3}")
    g(f"v_add_f32 v{vT+3}, v{ACC1+4}, v{ACC1+5}")
    g(f"v_add_f32 v{vT+4}, v{ACC1+6}, v{ACC1+7}")
    g(f"v_add_f32 v{vT+1}, v{vT+1}, v{vT+2}")
    g(f"v_add_f32 v{vT+3}, v{vT+3}, v{vT+4}")
    g(f"v_add_f32 v{vT+1}, v{vT+1}, v{vT+3}")
    g(f"v_mov_b32 v{vT+2}, 0x1f8")
    g(f"v_cmp_class_f32 vcc, v{vT+1}, v{vT+2}")
    g(f"v_cvt_pk_bf16_f32 v{vT+4}, v{ACC1+0}, v{ACC1+1}")
    g(f"v_cvt_pk_bf16_f32 v{vT+5}, v{ACC1+2}, v{ACC1+3}")
    g(f"v_cvt_pk_bf16_f32 v{vT+6}, v{ACC1+4}, v{ACC1+5}")
    g(f"v_cvt_pk_bf16_f32 v{vT+7}, v{ACC1+6}, v{ACC1+7}")
    g(f"s_and_b64 s[{sT0}:{sT0+1}], s[{sT0}:{sT0+1}], vcc")
    if force_slow:
        g(f"s_mov_b64 s[{sT0}:{sT0+1}], 0")
    g(f"s_cmp_eq_u64 s[{sT0}:{sT0+1}], exec")
    g("s_cbranch_scc0 L_slow")
    g.label("L_store")
    g(f"v_permlane32_swap_b32 v{vT+4}, v{vT+6}")
    g(f"v_permlane32_swap_b32 v{vT+5}, v{vT+7}")
    g(f"buffer_store_dwordx4 {r(vT+4,4)}, v{vF}, s[{SRDO}:{SRDO+3}], s{sQ1OFF} offen")
    if stamps:
        g.stamp()
        g("s_memrealtime s[92:93]")
        g("s_waitcnt lgkmcnt(0)")
        if dbg:
            g("s_cmp_lg_u32 s2, 5")
            g("s_cbranch_scc1 L_end")
            g(f"s_cmp_lg_u32 s{sW}, 7")
            g("s_cbranch_scc1 L_end")
            g(f"v_mov_b32 v{vT}, 0")
            for i in range(g.nst):
                g(f"s_sub_u32 s{sT0}, s{sTS+2*i}, s{sTS}")
                g(f"v_mov_b32 v{vT+2}, s{sT0}")
                g(f"global_store_dword v{vT}, v{vT+2}, s[42:43] offset:{4*i}")
                g("s_nop 1")
            g(f"s_sub_u32 s{sT0}, s92, s90")
            g(f"v_mov_b32 v{vT+2}, s{sT0}")
            g(f"global_store_dword v{vT}, v{vT+2}, s[42:43] offset:{4*g.nst}")
            g("s_endpgm")
        g(f"s_mov_b32 s{sTS+2*g.nst}, s90")
        g(f"s_mov_b32 s{sTS+2*g.nst+1}, s91")
        g(f"s_mov_b32 s{sTS+2*g.nst+2}, s92")
        g(f"s_mov_b32 s{sTS+2*g.nst+3}, s93")
        g.nst += 2
        g(f"s_lshl_b32 s{sT0}, s2, 3")
        g(f"s_add_u32 s{sT0}, s{sT0}, s{sW}")
        g(f"s_lshl_b32 s{sT0}, s{sT0}, 8")
        g(f"v_mov_b32 v{vT}, s{sT0}")
        for i in range(g.nst):
            g(f"v_mov_b32 v{vT+2}, s{sTS+2*i}")
            g(f"v_mov_b32 v{vT+3}, s{sTS+2*i+1}")
            g(f"global_store_dwordx2 v{vT}, v[{vT+2}:{vT+3}], s[42:43] offset:{8*i}")
            g("s_nop 1")
    g.label("L_end")
    g("s_endpgm")
    g.label("L_slow")
    g(f"s_cmp_lg_u32 s{sSLOW}, 0")
    g("s_cbranch_scc1 L_store")
    g(f"s_mov_b32 s{sSLOW}, 1")
    g.c("pass 1: true row max over all 2048 keys")
    g(f"v_add_u32 v{vAK}, {L_K}, v{vL16}")
    g(f"v_mov_b32 v{vT}, 0xff800000")
    g(f"s_mov_b32 s{sCNT}, 64")
    g.label("L_s1")
    krd(g, KF[0], 0)
    g("s_waitcnt lgkmcnt(0)")
    qk(g, S0, KF[0], Q1)
    g(f"v_add_u32 v{vAK}, 0x400, v{vAK}")
    g("s_nop 15")
    for i in range(8):
        g(f"v_max3_f32 v{vT}, v{vT}, v{S0+2*i}, v{S0+2*i+1}")
    g(f"s_sub_u32 s{sCNT}, s{sCNT}, 1")
    g(f"s_cmp_lg_u32 s{sCNT}, 0")
    g("s_cbranch_scc1 L_s1")
    g(f"v_mov_b32 v{vT+1}, v{vT}")
    g("s_nop 1")
    g(f"v_permlane32_swap_b32 v{vT}, v{vT+1}")
    g("s_nop 1")
    g(f"v_max_f32 v{vT}, v{vT}, v{vT+1}")
    for i in range(16): g(f"v_sub_f32 v{CB+i}, 0, v{vT}")
    for i in range(16): g(f"v_mov_b32 v{ACC1+i}, 0")
    g.c("pass 2: exp(s - max), PV and row sum")
    g(f"v_add_u32 v{vAK}, {L_K}, v{vL16}")
    g(f"v_and_b32 v{vT}, 15, v0")
    g(f"v_lshlrev_b32 v{vT}, 3, v{vT}")
    g(f"v_bfe_u32 v{vT+1}, v0, 5, 1")
    g(f"v_lshlrev_b32 v{vT+1}, 8, v{vT+1}")
    g(f"v_add_u32 v{vT+1}, {L_V}, v{vT+1}")
    g(f"v_mov_b32 v{vT+2}, {L_ONES + 128}")
    g(f"v_cmp_ne_u32 vcc, 0, v{vINC}")
    g(f"v_lshrrev_b32 v{vINC}, 2, v{vINC}")
    g("s_nop 0")
    g(f"v_cndmask_b32 v{vT+1}, v{vT+2}, v{vT+1}, vcc")
    g(f"v_add_u32 v{vAV}, v{vT}, v{vT+1}")
    g(f"s_mov_b32 s{sCNT}, 64")
    g.label("L_s2")
    krd(g, KF[0], 0)
    trd(g, VA[0], 0)
    trd(g, VA[0] + 2, 128)
    trd(g, VB[0], 512)
    trd(g, VB[0] + 2, 640)
    g("s_waitcnt lgkmcnt(0)")
    qk(g, S0, KF[0], Q1, r(CB, 16))
    g(f"v_add_u32 v{vAK}, 0x400, v{vAK}")
    g(f"v_add_u32 v{vAV}, v{vINC}, v{vAV}")
    g("s_nop 15")
    exps(g, S0, 0, 16)
    g("s_nop 1")
    smf(g, ACC1, VA[0], S0)
    smf(g, ACC1, VB[0], S0 + 8)
    g(f"s_sub_u32 s{sCNT}, s{sCNT}, 1")
    g(f"s_cmp_lg_u32 s{sCNT}, 0")
    g("s_cbranch_scc1 L_s2")
    g("s_nop 15")
    g("s_branch L_fin")
    g.L.append('.section .rodata,"a"')
    g.L.append(".p2align 6")
    g.L.append(f".amdhsa_kernel {NAME}_kernel")
    g.L.append(f"  .amdhsa_next_free_vgpr {NVGPR}")
    g.L.append(f"  .amdhsa_next_free_sgpr 96")
    g.L.append(f"  .amdhsa_accum_offset {(NVGPR+3)//4*4}")
    g.L.append("  .amdhsa_group_segment_fixed_size 0")
    g.L.append("  .amdhsa_kernarg_size 48")
    g.L.append("  .amdhsa_user_sgpr_count 2")
    g.L.append("  .amdhsa_user_sgpr_kernarg_segment_ptr 1")
    g.L.append("  .amdhsa_system_sgpr_workgroup_id_x 1")
    g.L.append(".end_amdhsa_kernel")
    return "\n".join(g.L) + "\n"

if __name__ == "__main__":
    ap = argparse.ArgumentParser()
    ap.add_argument("-o", default=f"cdna_kernels/{NAME}.s")
    ap.add_argument("--stamps", action="store_true")
    ap.add_argument("--force-slow", action="store_true")
    ap.add_argument("--dbg", action="store_true")
    a = ap.parse_args()
    open(a.o, "w").write(build(a.stamps or a.dbg, a.force_slow, a.dbg))
```

```python
import sys, argparse
from gen import HEADER, NAME

L_ONES = 0
L_K = 8192
L_V = L_K + 65536
L_X = L_V + 65536
XSLOT = 2304
LDS_BYTES = L_X + 8 * XSLOT

vF = 1; vL16 = 2; vAK = 3; vAV = 4; vINC = 5; vIDX = 6
vXW = 7; vXW4 = 8; vXR = 9; vXR4 = 10
vT = 12
Q0 = 20; Q1 = 24
KF = [28, 32]; VA = [36, 40]; VB = [44, 48]
S0 = 52; S1 = 68; ACC0 = 84; ACC1 = 100
CB = 116
NVGPR = 132
sQ, sK, sV, sO = 4, 6, 8, 10
SRDK, SRDV, SRDQ, SRDO = 12, 16, 20, 24
sW, sHEAD, sQB, sQP, sKH = 28, 29, 30, 31, 32
sQ1OFF, sQ0OFF, sWL, sT0, sT1 = 33, 34, 35, 36, 37
sSLOW, sCNT, sD = 40, 41, 38
sTS = 44

def r(base, n): return f"v[{base}:{base+n-1}]"

class Gen:
    def __init__(self, o):
        self.L = []; self.o = o; self.nst = 0
    def __call__(self, s): self.L.append("    " + s)
    def label(self, s): self.L.append(s + ":")
    def c(self, s): self.L.append("    ; " + s)
    def stamp(self):
        if self.o.stamps:
            i = sTS + 2 * self.nst
            self(f"s_memtime s[{i}:{i+1}]")
            self.nst += 1

def exps(g, S, lo, hi):
    for i in range(lo, hi): g(f"v_exp_f32 v{S+i}, v{S+i}")
def smf(g, acc, A, B): g(f"v_smfmac_f32_32x32x32_bf16 {r(acc,16)}, {r(A,4)}, {r(B,8)}, v{vIDX}")
def qk(g, S, K, Q, C="0"): g(f"v_mfma_f32_32x32x16_bf16 {r(S,16)}, {r(K,4)}, {r(Q,4)}, {C}")
def trd(g, dst, off): g(f"ds_read_b64_tr_b16 {r(dst,2)}, v{vAV} offset:{off}")
def krd(g, dst, off): g(f"ds_read_b128 {r(dst,4)}, v{vAK} offset:{off}")

def dma_k(i):
    return [f"s_add_u32 m0, s{sWL}, {L_K + i*4096}", f"s_add_u32 s{sD}, s{sWL}, {i*4096}",
            f"buffer_load_dwordx4 v{vF}, s[{SRDK}:{SRDK+3}], s{sD} offen lds"]
def dma_v(i):
    return [f"s_add_u32 m0, s{sWL}, {L_V + i*4096}", f"s_add_u32 s{sD}, s{sWL}, {i*4096}",
            f"buffer_load_dwordx4 v{vL16}, s[{SRDV}:{SRDV+3}], s{sD} offen lds"]

VPER = 4
def body(g, kt, extra):
    o = g.o
    f = kt & 1
    last = kt == 31
    vo = ((kt % VPER) + 1) * 1024
    ko = (kt + 2) * 1024
    def X(m):
        for s in extra.get(m, []): g(s)
    if kt > 0:
        exps(g, S1, 12, 16)
        exps(g, S0, 0, 2)
        smf(g, ACC1, VB[f ^ 1], S1 + 8)
    if not last: trd(g, VA[f ^ 1], vo)
    X(0)
    exps(g, S0, 2, 7)
    qk(g, S1, KF[f], Q1)
    if not last: trd(g, VA[f ^ 1] + 2, vo + 128)
    else: g("s_nop 0")
    X(1)
    exps(g, S0, 7, 12)
    smf(g, ACC0, VA[f], S0)
    if kt < 30: krd(g, KF[f], ko)
    else: g("s_nop 0")
    X(2)
    exps(g, S0, 12, 16)
    exps(g, S1, 0, 2)
    smf(g, ACC0, VB[f], S0 + 8)
    if not last: trd(g, VB[f ^ 1], vo + 512)
    X(3)
    exps(g, S1, 2, 7)
    if not last:
        qk(g, S0, KF[f ^ 1], Q0)
        trd(g, VB[f ^ 1] + 2, vo + 640)
    X(4)
    exps(g, S1, 7, 12)
    smf(g, ACC1, VA[f], S1)
    if not last: g("s_waitcnt lgkmcnt(0)")
    X(5)
    if kt % VPER == VPER - 1 and not last:
        g(f"v_add_u32 v{vAV}, v{vINC}, v{vAV}")

def scale_q(g, Q):
    for i in range(4):
        a, b = vT + 2 * i, vT + 2 * i + 1
        g(f"v_lshlrev_b32 v{a}, 16, v{Q+i}")
        g(f"v_and_b32 v{b}, 0xffff0000, v{Q+i}")
    for i in range(8):
        g(f"v_mul_f32 v{vT+i}, 0x3eb8aa3b, v{vT+i}")
    for i in range(4):
        g(f"v_cvt_pk_bf16_f32 v{Q+i}, v{vT+2*i}, v{vT+2*i+1}")

def build(o):
    g = Gen(o)
    g.L.append(HEADER.rstrip("\n"))
    g.L.append(f"; @launch grid=(256,1,1) block=(512,1,1) lds={LDS_BYTES}")
    g.L.append('.amdgcn_target "amdgcn-amd-amdhsa--gfx950"')
    g.L.append(".text")
    g.L.append(f".globl {NAME}_kernel")
    g.L.append(".p2align 8")
    g.L.append(f".type {NAME}_kernel,@function")
    g.label(f"{NAME}_kernel")
    g("s_cmp_ge_u32 s2, 256")
    g("s_cbranch_scc1 L_end")
    g("s_load_dwordx8 s[4:11], s[0:1], 0")
    if o.stamps:
        g(f"s_load_dwordx2 s[42:43], s[0:1], 40")
        g("s_memrealtime s[90:91]")
    g.stamp()
    g(f"v_lshrrev_b32 v{vT}, 6, v0")
    g(f"v_and_b32 v{vT+1}, 31, v0")
    g(f"v_readfirstlane_b32 s{sW}, v{vT}")
    g(f"v_and_b32 v{vT+2}, 63, v0")
    g(f"v_lshlrev_b32 v{vT+1}, 5, v{vT+1}")
    g(f"v_bfe_u32 v{vT+3}, v0, 5, 1")
    g(f"v_lshl_add_u32 v{vF}, v{vT+3}, 4, v{vT+1}")
    g(f"v_lshlrev_b32 v{vL16}, 4, v{vT+2}")
    g.c("head = (wg&7)*4 + (wg>>6), qblock = (wg>>3)&7")
    g(f"s_and_b32 s{sHEAD}, s2, 7")
    g(f"s_lshr_b32 s{sT0}, s2, 6")
    g(f"s_lshl_b32 s{sHEAD}, s{sHEAD}, 2")
    g(f"s_add_u32 s{sHEAD}, s{sHEAD}, s{sT0}")
    g(f"s_lshl_b32 s{sHEAD}, s{sHEAD}, 16")
    g(f"s_bfe_u32 s{sQB}, s2, 0x30003")
    g(f"s_lshl_b32 s{sQB}, s{sQB}, 13")
    g(f"s_add_u32 s{sQB}, s{sQB}, s{sHEAD}")
    g(f"s_and_b32 s{sQP}, s{sW}, 3")
    g(f"s_lshr_b32 s{sKH}, s{sW}, 2")
    g(f"s_lshl_b32 s{sT0}, s{sQP}, 11")
    g(f"s_add_u32 s{sT0}, s{sT0}, s{sQB}")
    g(f"s_lshl_b32 s{sT1}, s{sKH}, 10")
    g(f"s_add_u32 s{sQ1OFF}, s{sT0}, s{sT1}")
    g(f"s_xor_b32 s{sT1}, s{sT1}, 1024")
    g(f"s_add_u32 s{sQ0OFF}, s{sT0}, s{sT1}")
    g(f"s_lshl_b32 s{sWL}, s{sKH}, 15")
    g(f"s_lshl_b32 s{sT0}, s{sQP}, 10")
    g(f"s_add_u32 s{sWL}, s{sWL}, s{sT0}")
    for srd, n in ((SRDK, 0x10000), (SRDV, 0x10000), (SRDQ, 0x200000), (SRDO, 0x200000)):
        g(f"s_mov_b32 s{srd+2}, {hex(n)}")
        g(f"s_mov_b32 s{srd+3}, 0x20000")
    g(f"s_add_u32 m0, s{sWL}, {L_K}")
    g("s_waitcnt lgkmcnt(0)")
    g.stamp()
    g(f"s_add_u32 s{SRDK}, s{sK}, s{sHEAD}")
    g(f"s_addc_u32 s{SRDK+1}, s{sK+1}, 0")
    g(f"s_mov_b32 s{SRDQ}, s{sQ}")
    g(f"s_mov_b32 s{SRDQ+1}, s{sQ+1}")
    g(f"buffer_load_dwordx4 {r(Q0,4)}, v{vF}, s[{SRDQ}:{SRDQ+3}], s{sQ0OFF} offen")
    g(f"buffer_load_dwordx4 v{vF}, s[{SRDK}:{SRDK+3}], s{sWL} offen lds")
    g(f"s_add_u32 s{SRDV}, s{sV}, s{sHEAD}")
    g(f"s_addc_u32 s{SRDV+1}, s{sV+1}, 0")
    g(f"s_add_u32 m0, s{sWL}, {L_V}")
    g(f"buffer_load_dwordx4 {r(Q1,4)}, v{vF}, s[{SRDQ}:{SRDQ+3}], s{sQ1OFF} offen")
    g(f"buffer_load_dwordx4 v{vL16}, s[{SRDV}:{SRDV+3}], s{sWL} offen lds")
    g.stamp()
    g(f"s_mov_b32 s{SRDO}, s{sO}")
    g(f"s_mov_b32 s{SRDO+1}, s{sO+1}")
    g.c("constant rows for the row sum: each wave writes 1 KiB")
    if o.ones == "all":
        for i in range(4): g(f"v_mov_b32 v{vT+4+i}, 0x3f803f80")
    else:
        g(f"v_and_b32 v{vT+4}, 1, v0")
        g(f"v_subrev_u32 v{vT+4}, 1, v{vT+4}")
        g(f"v_and_b32 v{vT+4}, 0x3f80, v{vT+4}")
        g(f"v_mov_b32 v{vT+5}, 0")
        g(f"v_mov_b32 v{vT+6}, v{vT+4}")
        g(f"v_mov_b32 v{vT+7}, 0")
    g(f"s_lshl_b32 s{sT0}, s{sW}, 10")
    g(f"v_add_u32 v{vT}, s{sT0}, v{vL16}")
    g(f"ds_write_b128 v{vT}, {r(vT+4,4)} offset:{L_ONES}")
    g(f"s_lshl_b32 s{sT0}, s{sKH}, 15")
    g(f"s_add_u32 s{sT1}, s{sT0}, {L_K}")
    g(f"v_add_u32 v{vAK}, s{sT1}, v{vL16}")
    g(f"v_and_b32 v{vT}, 15, v0")
    g(f"v_lshlrev_b32 v{vT}, 3, v{vT}")
    g(f"v_bfe_u32 v{vT+1}, v0, 5, 1")
    g(f"v_lshlrev_b32 v{vT+1}, 8, v{vT+1}")
    g(f"s_add_u32 s{sT1}, s{sT0}, {L_V}")
    g(f"v_add_u32 v{vT+1}, s{sT1}, v{vT+1}")
    g(f"v_mov_b32 v{vT+2}, {L_ONES + 128}")
    g(f"v_and_b32 v{vT+3}, 16, v0")
    g(f"v_cmp_eq_u32 vcc, 0, v{vT+3}")
    g(f"v_mov_b32 v{vT+3}, {VPER*1024}")
    g(f"v_mov_b32 v{vIDX}, 0xdddddddd")
    g(f"v_cndmask_b32 v{vT+1}, v{vT+2}, v{vT+1}, vcc")
    g(f"v_cndmask_b32 v{vINC}, 0, v{vT+3}, vcc")
    g(f"v_add_u32 v{vAV}, v{vT}, v{vT+1}")
    g(f"s_mul_i32 s{sT0}, s{sW}, {XSLOT}")
    g(f"s_xor_b32 s{sT1}, s{sW}, 4")
    g(f"s_mul_i32 s{sT1}, s{sT1}, {XSLOT}")
    g(f"s_add_u32 s{sT0}, s{sT0}, {L_X}")
    g(f"s_add_u32 s{sT1}, s{sT1}, {L_X}")
    g(f"v_lshrrev_b32 v{vT}, 2, v{vL16}")
    g(f"v_add_u32 v{vXW}, s{sT0}, v{vL16}")
    g(f"v_add_u32 v{vXR}, s{sT1}, v{vL16}")
    g(f"v_add_u32 v{vXW4}, s{sT0}, v{vT}")
    g(f"v_add_u32 v{vXR4}, s{sT1}, v{vT}")
    for i in range(16): g(f"v_mov_b32 v{ACC0+i}, 0")
    for i in range(16): g(f"v_mov_b32 v{ACC1+i}, 0")
    g(f"s_mov_b32 s{sSLOW}, 0")
    npre = o.pre
    for i in range(1, 1 + npre):
        for s in dma_k(i) + dma_v(i): g(s)
    g.stamp()
    g(f"s_waitcnt vmcnt({3 + 2*npre})")
    scale_q(g, Q0)
    g(f"s_waitcnt vmcnt({1 + 2*npre})")
    g.stamp()
    scale_q(g, Q1)
    g(f"s_waitcnt vmcnt({2*npre}) lgkmcnt(0)")
    g.stamp()
    g("s_barrier")
    g.stamp()
    if o.stamps: g("s_memrealtime s[94:95]")
    krd(g, KF[0], 0)
    krd(g, KF[1], 1024)
    trd(g, VA[0], 0)
    trd(g, VA[0] + 2, 128)
    trd(g, VB[0], 512)
    trd(g, VB[0] + 2, 640)
    g("s_waitcnt lgkmcnt(5)" if not o.stamps else "s_waitcnt lgkmcnt(0)")
    qk(g, S0, KF[0], Q0)
    g("s_waitcnt lgkmcnt(0)")
    g("s_nop 10")
    exps(g, S0, 0, 2)
    pend = []
    for i in range(1 + npre, 8):
        pend.append(dma_k(i)); pend.append(dma_v(i))
    issued = 2 + 2 * npre
    covered = 1
    bars = dict(o.bars)
    for kt in range(32):
        extra = {}
        if kt in bars:
            need = bars[kt]
            n_out = max(issued - 2 * need, 0)
            g(f"s_waitcnt vmcnt({n_out})")
            g("s_barrier")
            covered = need
            g.stamp() if o.stampbars else None
        assert (kt + 2) // 4 < covered or kt >= 30, (kt, covered)
        sites = o.dsites
        for m in sites:
            if pend:
                extra.setdefault(m, []).extend(pend.pop(0)); issued += 1
        if o.prio == "rot":
            extra.setdefault(2, []).insert(0, f"s_setprio {3 - ((2*kt+1) & 3)}")
            extra.setdefault(5, []).insert(0, f"s_setprio {3 - ((2*kt+2) & 3)}")
        elif o.prio == "rotb":
            extra.setdefault(5, []).insert(0, f"s_setprio {3 - ((kt+1) & 3)}")
        body(g, kt, extra)
    assert not pend
    g.stamp()
    if o.stamps: g("s_memrealtime s[96:97]")
    g("s_nop 0")
    g(f"ds_write_b128 v{vXW}, {r(ACC0,4)}")
    g(f"ds_write_b128 v{vXW}, {r(ACC0+4,4)} offset:1024")
    g(f"ds_write_b32 v{vXW4}, v{ACC0+8} offset:2048")
    exps(g, S1, 12, 16)
    g("s_nop 1")
    smf(g, ACC1, VB[1], S1 + 8)
    g("s_waitcnt lgkmcnt(0)")
    g("s_barrier")
    g(f"ds_read_b128 {r(S0,4)}, v{vXR}")
    g(f"ds_read_b128 {r(S0+4,4)}, v{vXR} offset:1024")
    g(f"ds_read_b32 v{S0+8}, v{vXR4} offset:2048")
    g("s_nop 7")
    g("s_waitcnt lgkmcnt(0)")
    g(f"v_add_f32 v{ACC1+8}, v{ACC1+8}, v{S0+8}")
    for i in range(8): g(f"v_add_f32 v{ACC1+i}, v{ACC1+i}, v{S0+i}")
    g.label("L_fin")
    g(f"v_rcp_f32 v{vT}, v{ACC1+8}")
    g.c("run-time safety check: 2^-40 <= l <= 2^80 (false for NaN/Inf) and all outputs finite")
    g(f"v_cmp_le_f32 vcc, 0x2b800000, v{ACC1+8}")
    g(f"s_mov_b64 s[{sT0}:{sT0+1}], vcc")
    g(f"v_cmp_ge_f32 vcc, 0x67800000, v{ACC1+8}")
    for i in range(8): g(f"v_mul_f32 v{ACC1+i}, v{ACC1+i}, v{vT}")
    g(f"s_and_b64 s[{sT0}:{sT0+1}], s[{sT0}:{sT0+1}], vcc")
    g(f"v_add_f32 v{vT+1}, v{ACC1+0}, v{ACC1+1}")
    g(f"v_add_f32 v{vT+2}, v{ACC1+2}, v{ACC1+3}")
    g(f"v_add_f32 v{vT+3}, v{ACC1+4}, v{ACC1+5}")
    g(f"v_add_f32 v{vT+4}, v{ACC1+6}, v{ACC1+7}")
    g(f"v_add_f32 v{vT+1}, v{vT+1}, v{vT+2}")
    g(f"v_add_f32 v{vT+3}, v{vT+3}, v{vT+4}")
    g(f"v_add_f32 v{vT+1}, v{vT+1}, v{vT+3}")
    g(f"v_mov_b32 v{vT+2}, 0x1f8")
    g(f"v_cmp_class_f32 vcc, v{vT+1}, v{vT+2}")
    g(f"v_cvt_pk_bf16_f32 v{vT+4}, v{ACC1+0}, v{ACC1+1}")
    g(f"v_cvt_pk_bf16_f32 v{vT+5}, v{ACC1+2}, v{ACC1+3}")
    g(f"v_cvt_pk_bf16_f32 v{vT+6}, v{ACC1+4}, v{ACC1+5}")
    g(f"v_cvt_pk_bf16_f32 v{vT+7}, v{ACC1+6}, v{ACC1+7}")
    g(f"s_and_b64 s[{sT0}:{sT0+1}], s[{sT0}:{sT0+1}], vcc")
    if o.force_slow:
        g(f"s_mov_b64 s[{sT0}:{sT0+1}], 0")
    g(f"s_cmp_eq_u64 s[{sT0}:{sT0+1}], exec")
    g("s_cbranch_scc0 L_slow")
    g.label("L_store")
    g(f"v_permlane32_swap_b32 v{vT+4}, v{vT+6}")
    g(f"v_permlane32_swap_b32 v{vT+5}, v{vT+7}")
    g(f"buffer_store_dwordx4 {r(vT+4,4)}, v{vF}, s[{SRDO}:{SRDO+3}], s{sQ1OFF} offen")
    if o.stamps:
        g.stamp()
        g("s_memrealtime s[92:93]")
        g("s_waitcnt lgkmcnt(0)")
        g(f"s_lshl_b32 s{sT0}, s2, 3")
        g(f"s_add_u32 s{sT0}, s{sT0}, s{sW}")
        g(f"s_lshl_b32 s{sT0}, s{sT0}, 8")
        g(f"v_mov_b32 v{vT}, s{sT0}")
        regs = [sTS + 2 * i for i in range(g.nst)] + [90, 92, 94, 96]
        for i, sr in enumerate(regs):
            g(f"v_mov_b32 v{vT+2}, s{sr}")
            g(f"v_mov_b32 v{vT+3}, s{sr+1}")
            g(f"global_store_dwordx2 v{vT}, v[{vT+2}:{vT+3}], s[42:43] offset:{8*i}")
            g("s_nop 1")
        sys.stderr.write(f"nstamps={g.nst}\n")
    g.label("L_end")
    g("s_endpgm")
    g.label("L_slow")
    g(f"s_cmp_lg_u32 s{sSLOW}, 0")
    g("s_cbranch_scc1 L_store")
    g(f"s_mov_b32 s{sSLOW}, 1")
    g.c("pass 1: true row max over all 2048 keys")
    g(f"v_add_u32 v{vAK}, {L_K}, v{vL16}")
    g(f"v_mov_b32 v{vT}, 0xff800000")
    g(f"s_mov_b32 s{sCNT}, 64")
    g.label("L_s1")
    krd(g, KF[0], 0)
    g("s_waitcnt lgkmcnt(0)")
    qk(g, S0, KF[0], Q1)
    g(f"v_add_u32 v{vAK}, 0x400, v{vAK}")
    g("s_nop 15")
    for i in range(8):
        g(f"v_max3_f32 v{vT}, v{vT}, v{S0+2*i}, v{S0+2*i+1}")
    g(f"s_sub_u32 s{sCNT}, s{sCNT}, 1")
    g(f"s_cmp_lg_u32 s{sCNT}, 0")
    g("s_cbranch_scc1 L_s1")
    g(f"v_mov_b32 v{vT+1}, v{vT}")
    g("s_nop 1")
    g(f"v_permlane32_swap_b32 v{vT}, v{vT+1}")
    g("s_nop 1")
    g(f"v_max_f32 v{vT}, v{vT}, v{vT+1}")
    for i in range(16): g(f"v_sub_f32 v{CB+i}, 0, v{vT}")
    for i in range(16): g(f"v_mov_b32 v{ACC1+i}, 0")
    g.c("pass 2: exp(s - max), PV and row sum")
    g(f"v_add_u32 v{vAK}, {L_K}, v{vL16}")
    g(f"v_and_b32 v{vT}, 15, v0")
    g(f"v_lshlrev_b32 v{vT}, 3, v{vT}")
    g(f"v_bfe_u32 v{vT+1}, v0, 5, 1")
    g(f"v_lshlrev_b32 v{vT+1}, 8, v{vT+1}")
    g(f"v_add_u32 v{vT+1}, {L_V}, v{vT+1}")
    g(f"v_mov_b32 v{vT+2}, {L_ONES + 128}")
    g(f"v_cmp_ne_u32 vcc, 0, v{vINC}")
    g(f"v_mov_b32 v{vT+3}, 0x400")
    g("s_nop 0")
    g(f"v_cndmask_b32 v{vT+1}, v{vT+2}, v{vT+1}, vcc")
    g(f"v_cndmask_b32 v{vINC}, 0, v{vT+3}, vcc")
    g(f"v_add_u32 v{vAV}, v{vT}, v{vT+1}")
    g(f"s_mov_b32 s{sCNT}, 64")
    g.label("L_s2")
    krd(g, KF[0], 0)
    trd(g, VA[0], 0)
    trd(g, VA[0] + 2, 128)
    trd(g, VB[0], 512)
    trd(g, VB[0] + 2, 640)
    g("s_waitcnt lgkmcnt(0)")
    qk(g, S0, KF[0], Q1, r(CB, 16))
    g(f"v_add_u32 v{vAK}, 0x400, v{vAK}")
    g(f"v_add_u32 v{vAV}, v{vINC}, v{vAV}")
    g("s_nop 15")
    exps(g, S0, 0, 16)
    g("s_nop 1")
    smf(g, ACC1, VA[0], S0)
    smf(g, ACC1, VB[0], S0 + 8)
    g(f"s_sub_u32 s{sCNT}, s{sCNT}, 1")
    g(f"s_cmp_lg_u32 s{sCNT}, 0")
    g("s_cbranch_scc1 L_s2")
    g("s_nop 15")
    g("s_branch L_fin")
    g.L.append('.section .rodata,"a"')
    g.L.append(".p2align 6")
    g.L.append(f".amdhsa_kernel {NAME}_kernel")
    g.L.append(f"  .amdhsa_next_free_vgpr {NVGPR}")
    g.L.append(f"  .amdhsa_next_free_sgpr 100")
    g.L.append(f"  .amdhsa_accum_offset {(NVGPR+3)//4*4}")
    g.L.append("  .amdhsa_group_segment_fixed_size 0")
    g.L.append("  .amdhsa_kernarg_size 48")
    g.L.append("  .amdhsa_user_sgpr_count 2")
    g.L.append("  .amdhsa_user_sgpr_kernarg_segment_ptr 1")
    g.L.append("  .amdhsa_system_sgpr_workgroup_id_x 1")
    g.L.append(".end_amdhsa_kernel")
    return "\n".join(g.L) + "\n"

def parse(argv=None):
    ap = argparse.ArgumentParser()
    ap.add_argument("-o", default=f"cdna_kernels/{NAME}.s")
    ap.add_argument("--stamps", action="store_true")
    ap.add_argument("--stampbars", action="store_true")
    ap.add_argument("--force-slow", action="store_true")
    ap.add_argument("--ones", default="two")
    ap.add_argument("--pre", type=int, default=1)
    ap.add_argument("--prio", default="none")
    ap.add_argument("--bars", default="2:2,6:5,18:8")
    ap.add_argument("--dsites", default="1,4")
    a = ap.parse_args(argv)
    a.bars = [tuple(map(int, x.split(":"))) for x in a.bars.split(",")]
    a.dsites = [int(x) for x in a.dsites.split(",")]
    return a
if __name__ == "__main__":
    a = parse()
    open(a.o, "w").write(build(a))
```

```python
import sys, argparse
from gen import HEADER, NAME

L_ONES = 0
L_K = 8192
L_V = L_K + 65536
L_X = L_V + 65536
XSLOT = 2304
LDS_BYTES = L_X + 8 * XSLOT

vF = 1; vL16 = 2; vAK = 3; vAV = 4; vINC = 5; vIDX = 6
vXW = 7; vXW4 = 8; vXR = 9; vXR4 = 10
vT = 12
Q0 = 20; Q1 = 24
KF = [28, 32]; VA = [36, 40]; VB = [44, 48]
S0 = 52; S1 = 68; ACC0 = 84; ACC1 = 100
CB = 116
NVGPR = 132
sQ, sK, sV, sO = 4, 6, 8, 10
SRDK, SRDV, SRDQ, SRDO = 12, 16, 20, 24
sW, sHEAD, sQB, sQP, sKH = 28, 29, 30, 31, 32
sQ1OFF, sQ0OFF, sWL, sT0, sT1 = 33, 34, 35, 36, 37
sSLOW, sCNT, sD = 40, 41, 38
sTS = 44

def r(base, n): return f"v[{base}:{base+n-1}]"

class Gen:
    def __init__(self, o):
        self.L = []; self.o = o; self.nst = 0
    def __call__(self, s): self.L.append("    " + s)
    def label(self, s): self.L.append(s + ":")
    def c(self, s): self.L.append("    ; " + s)
    def stamp(self):
        if self.o.stamps:
            i = sTS + 2 * self.nst
            self(f"s_memtime s[{i}:{i+1}]")
            self.nst += 1

def exps(g, S, lo, hi):
    for i in range(lo, hi): g(f"v_exp_f32 v{S+i}, v{S+i}")
def smf(g, acc, A, B):
    x = g.o.xp
    if x == "nosmf": g("s_nop 0"); return
    if x == "smf16": g(f"v_smfmac_f32_16x16x64_bf16 {r(acc,4)}, {r(A,4)}, {r(B,8)}, v{vIDX}"); return
    if x == "densepv":
        for i in range(4): g(f"v_cvt_pk_bf16_f32 v{CB+i}, v{B+2*i}, v{B+2*i+1}")
        g("s_nop 1")
        g(f"v_mfma_f32_32x32x16_bf16 {r(acc,16)}, {r(A,4)}, {r(CB,4)}, {r(acc,16)}"); return
    if x == "densenocvt":
        g(f"v_mfma_f32_32x32x16_bf16 {r(acc,16)}, {r(A,4)}, {r(Q0,4)}, {r(acc,16)}"); return
    if x == "smfacc":
        g(f"v_smfmac_f32_32x32x32_bf16 a[{acc-ACC0}:{acc-ACC0+15}], {r(A,4)}, {r(B,8)}, v{vIDX}"); return
    g(f"v_smfmac_f32_32x32x32_bf16 {r(acc,16)}, {r(A,4)}, {r(B,8)}, v{vIDX}")
def qk(g, S, K, Q, C="0"):
    x = g.o.xp
    if x == "qk16":
        for i in range(4):
            g(f"v_mfma_f32_16x16x16_bf16 {r(S+4*i,4)}, {r(K+2*(i&1),2)}, {r(Q+2*(i>>1),2)}, 0")
        return
    g(f"v_mfma_f32_32x32x16_bf16 {r(S,16)}, {r(K,4)}, {r(Q,4)}, {C}")
def trd(g, dst, off): g(f"ds_read_b64_tr_b16 {r(dst,2)}, v{vAV} offset:{off}")
def krd(g, dst, off): g(f"ds_read_b128 {r(dst,4)}, v{vAK} offset:{off}")

def dma_k(i):
    return [f"s_add_u32 m0, s{sWL}, {L_K + i*4096}", f"s_add_u32 s{sD}, s{sWL}, {i*4096}",
            f"buffer_load_dwordx4 v{vF}, s[{SRDK}:{SRDK+3}], s{sD} offen lds"]
def dma_v(i):
    return [f"s_add_u32 m0, s{sWL}, {L_V + i*4096}", f"s_add_u32 s{sD}, s{sWL}, {i*4096}",
            f"buffer_load_dwordx4 v{vL16}, s[{SRDV}:{SRDV+3}], s{sD} offen lds"]

VPER = 4
def body(g, kt, extra):
    o = g.o
    f = kt & 1
    last = kt == 31
    vo = ((kt % VPER) + 1) * 1024
    ko = (kt + 2) * 1024
    def X(m):
        for s in extra.get(m, []): g(s)
    if kt > 0:
        exps(g, S1, 12, 16)
        exps(g, S0, 0, 2)
        smf(g, ACC1, VB[f ^ 1], S1 + 8)
    if not last: trd(g, VA[f ^ 1], vo)
    X(0)
    exps(g, S0, 2, 7)
    qk(g, S1, KF[f], Q1)
    if not last: trd(g, VA[f ^ 1] + 2, vo + 128)
    else: g("s_nop 0")
    X(1)
    exps(g, S0, 7, 12)
    smf(g, ACC0, VA[f], S0)
    if kt < 30: krd(g, KF[f], ko)
    else: g("s_nop 0")
    X(2)
    exps(g, S0, 12, 16)
    exps(g, S1, 0, 2)
    smf(g, ACC0, VB[f], S0 + 8)
    if not last: trd(g, VB[f ^ 1], vo + 512)
    X(3)
    exps(g, S1, 2, 7)
    if not last:
        qk(g, S0, KF[f ^ 1], Q0)
        trd(g, VB[f ^ 1] + 2, vo + 640)
    X(4)
    exps(g, S1, 7, 12)
    smf(g, ACC1, VA[f], S1)
    if not last: g("s_waitcnt lgkmcnt(0)")
    X(5)
    if kt % VPER == VPER - 1 and not last:
        g(f"v_add_u32 v{vAV}, v{vINC}, v{vAV}")

def scale_q(g, Q):
    for i in range(4):
        a, b = vT + 2 * i, vT + 2 * i + 1
        g(f"v_lshlrev_b32 v{a}, 16, v{Q+i}")
        g(f"v_and_b32 v{b}, 0xffff0000, v{Q+i}")
    for i in range(8):
        g(f"v_mul_f32 v{vT+i}, 0x3eb8aa3b, v{vT+i}")
    for i in range(4):
        g(f"v_cvt_pk_bf16_f32 v{Q+i}, v{vT+2*i}, v{vT+2*i+1}")

def build(o):
    g = Gen(o)
    g.L.append(HEADER.rstrip("\n"))
    g.L.append(f"; @launch grid=(256,1,1) block=(512,1,1) lds={LDS_BYTES}")
    g.L.append('.amdgcn_target "amdgcn-amd-amdhsa--gfx950"')
    g.L.append(".text")
    g.L.append(f".globl {NAME}_kernel")
    g.L.append(".p2align 8")
    g.L.append(f".type {NAME}_kernel,@function")
    g.label(f"{NAME}_kernel")
    g("s_cmp_ge_u32 s2, 256")
    g("s_cbranch_scc1 L_end")
    g("s_load_dwordx8 s[4:11], s[0:1], 0")
    if o.stamps or o.dbg:
        g(f"s_load_dwordx2 s[42:43], s[0:1], {32 if o.dbg else 40}")
        g("s_memrealtime s[90:91]")
    g.stamp()
    g(f"v_lshrrev_b32 v{vT}, 6, v0")
    g(f"v_and_b32 v{vT+1}, 31, v0")
    g(f"v_readfirstlane_b32 s{sW}, v{vT}")
    g(f"v_and_b32 v{vT+2}, 63, v0")
    g(f"v_lshlrev_b32 v{vT+1}, 5, v{vT+1}")
    g(f"v_bfe_u32 v{vT+3}, v0, 5, 1")
    g(f"v_lshl_add_u32 v{vF}, v{vT+3}, 4, v{vT+1}")
    g(f"v_lshlrev_b32 v{vL16}, 4, v{vT+2}")
    g.c("head = (wg&7)*4 + (wg>>6), qblock = (wg>>3)&7")
    g(f"s_and_b32 s{sHEAD}, s2, 7")
    g(f"s_lshr_b32 s{sT0}, s2, 6")
    g(f"s_lshl_b32 s{sHEAD}, s{sHEAD}, 2")
    g(f"s_add_u32 s{sHEAD}, s{sHEAD}, s{sT0}")
    g(f"s_lshl_b32 s{sHEAD}, s{sHEAD}, 16")
    g(f"s_bfe_u32 s{sQB}, s2, 0x30003")
    g(f"s_lshl_b32 s{sQB}, s{sQB}, 13")
    g(f"s_add_u32 s{sQB}, s{sQB}, s{sHEAD}")
    g(f"s_and_b32 s{sQP}, s{sW}, 3")
    g(f"s_lshr_b32 s{sKH}, s{sW}, 2")
    g(f"s_lshl_b32 s{sT0}, s{sQP}, 11")
    g(f"s_add_u32 s{sT0}, s{sT0}, s{sQB}")
    g(f"s_lshl_b32 s{sT1}, s{sKH}, 10")
    g(f"s_add_u32 s{sQ1OFF}, s{sT0}, s{sT1}")
    g(f"s_xor_b32 s{sT1}, s{sT1}, 1024")
    g(f"s_add_u32 s{sQ0OFF}, s{sT0}, s{sT1}")
    g(f"s_lshl_b32 s{sWL}, s{sKH}, 15")
    g(f"s_lshl_b32 s{sT0}, s{sQP}, 10")
    g(f"s_add_u32 s{sWL}, s{sWL}, s{sT0}")
    for srd, n in ((SRDK, 0x10000), (SRDV, 0x10000), (SRDQ, 0x200000), (SRDO, 0x200000)):
        g(f"s_mov_b32 s{srd+2}, {hex(n)}")
        g(f"s_mov_b32 s{srd+3}, 0x20000")
    g(f"s_add_u32 m0, s{sWL}, {L_K}")
    g("s_waitcnt lgkmcnt(0)")
    g.stamp()
    g(f"s_add_u32 s{SRDK}, s{sK}, s{sHEAD}")
    g(f"s_addc_u32 s{SRDK+1}, s{sK+1}, 0")
    g(f"s_mov_b32 s{SRDQ}, s{sQ}")
    g(f"s_mov_b32 s{SRDQ+1}, s{sQ+1}")
    g(f"buffer_load_dwordx4 {r(Q0,4)}, v{vF}, s[{SRDQ}:{SRDQ+3}], s{sQ0OFF} offen")
    g(f"buffer_load_dwordx4 v{vF}, s[{SRDK}:{SRDK+3}], s{sWL} offen lds")
    g(f"s_add_u32 s{SRDV}, s{sV}, s{sHEAD}")
    g(f"s_addc_u32 s{SRDV+1}, s{sV+1}, 0")
    g(f"s_add_u32 m0, s{sWL}, {L_V}")
    g(f"buffer_load_dwordx4 {r(Q1,4)}, v{vF}, s[{SRDQ}:{SRDQ+3}], s{sQ1OFF} offen")
    g(f"buffer_load_dwordx4 v{vL16}, s[{SRDV}:{SRDV+3}], s{sWL} offen lds")
    g.stamp()
    g(f"s_mov_b32 s{SRDO}, s{sO}")
    g(f"s_mov_b32 s{SRDO+1}, s{sO+1}")
    g.c("constant rows for the row sum: each wave writes 1 KiB")
    if o.ones == "all":
        for i in range(4): g(f"v_mov_b32 v{vT+4+i}, 0x3f803f80")
    else:
        g(f"v_and_b32 v{vT+4}, 1, v0")
        g(f"v_subrev_u32 v{vT+4}, 1, v{vT+4}")
        g(f"v_and_b32 v{vT+4}, 0x3f80, v{vT+4}")
        g(f"v_mov_b32 v{vT+5}, 0")
        g(f"v_mov_b32 v{vT+6}, v{vT+4}")
        g(f"v_mov_b32 v{vT+7}, 0")
    g(f"s_lshl_b32 s{sT0}, s{sW}, 10")
    g(f"v_add_u32 v{vT}, s{sT0}, v{vL16}")
    g(f"ds_write_b128 v{vT}, {r(vT+4,4)} offset:{L_ONES}")
    g(f"s_lshl_b32 s{sT0}, s{sKH}, 15")
    g(f"s_add_u32 s{sT1}, s{sT0}, {L_K}")
    g(f"v_add_u32 v{vAK}, s{sT1}, v{vL16}")
    g(f"v_and_b32 v{vT}, 15, v0")
    g(f"v_lshlrev_b32 v{vT}, 3, v{vT}")
    g(f"v_bfe_u32 v{vT+1}, v0, 5, 1")
    g(f"v_lshlrev_b32 v{vT+1}, 8, v{vT+1}")
    g(f"s_add_u32 s{sT1}, s{sT0}, {L_V}")
    g(f"v_add_u32 v{vT+1}, s{sT1}, v{vT+1}")
    g(f"v_mov_b32 v{vT+2}, {L_ONES + 128}")
    g(f"v_and_b32 v{vT+3}, 16, v0")
    g(f"v_cmp_eq_u32 vcc, 0, v{vT+3}")
    g(f"v_mov_b32 v{vT+3}, {VPER*1024}")
    g(f"v_mov_b32 v{vIDX}, 0xdddddddd")
    g(f"v_cndmask_b32 v{vT+1}, v{vT+2}, v{vT+1}, vcc")
    g(f"v_cndmask_b32 v{vINC}, 0, v{vT+3}, vcc")
    g(f"v_add_u32 v{vAV}, v{vT}, v{vT+1}")
    g(f"s_mul_i32 s{sT0}, s{sW}, {XSLOT}")
    g(f"s_xor_b32 s{sT1}, s{sW}, 4")
    g(f"s_mul_i32 s{sT1}, s{sT1}, {XSLOT}")
    g(f"s_add_u32 s{sT0}, s{sT0}, {L_X}")
    g(f"s_add_u32 s{sT1}, s{sT1}, {L_X}")
    g(f"v_lshrrev_b32 v{vT}, 2, v{vL16}")
    g(f"v_add_u32 v{vXW}, s{sT0}, v{vL16}")
    g(f"v_add_u32 v{vXR}, s{sT1}, v{vL16}")
    g(f"v_add_u32 v{vXW4}, s{sT0}, v{vT}")
    g(f"v_add_u32 v{vXR4}, s{sT1}, v{vT}")
    for i in range(16): g(f"v_mov_b32 v{ACC0+i}, 0")
    for i in range(16): g(f"v_mov_b32 v{ACC1+i}, 0")
    g(f"s_mov_b32 s{sSLOW}, 0")
    if o.xp == "smfacc":
        for i in range(32): g(f"v_accvgpr_write_b32 a{i}, 0")
    npre = o.pre
    for i in range(1, 1 + npre):
        for s in dma_k(i) + dma_v(i): g(s)
    g.stamp()
    g(f"s_waitcnt vmcnt({3 + 2*npre})")
    scale_q(g, Q0)
    g(f"s_waitcnt vmcnt({1 + 2*npre})")
    g.stamp()
    scale_q(g, Q1)
    g(f"s_waitcnt vmcnt({2*npre}) lgkmcnt(0)")
    g.stamp()
    g("s_barrier")
    g.stamp()
    if o.stamps or o.dbg: g("s_memrealtime s[94:95]")
    krd(g, KF[0], 0)
    krd(g, KF[1], 1024)
    trd(g, VA[0], 0)
    trd(g, VA[0] + 2, 128)
    trd(g, VB[0], 512)
    trd(g, VB[0] + 2, 640)
    g("s_waitcnt lgkmcnt(5)" if not (o.stamps or o.dbg) else "s_waitcnt lgkmcnt(0)")
    qk(g, S0, KF[0], Q0)
    g("s_waitcnt lgkmcnt(0)")
    g("s_nop 10")
    exps(g, S0, 0, 2)
    pend = []
    for i in range(1 + npre, 8):
        pend.append(dma_k(i)); pend.append(dma_v(i))
    issued = 2 + 2 * npre
    covered = 1
    bars = dict(o.bars)
    for kt in range(32):
        extra = {}
        if kt in bars:
            need = bars[kt]
            n_out = max(issued - 2 * need, 0)
            g(f"s_waitcnt vmcnt({n_out})")
            g("s_barrier")
            covered = need
            g.stamp() if o.stampbars else None
        assert (kt + 2) // 4 < covered or kt >= 30, (kt, covered)
        sites = o.dsites
        for m in sites:
            if pend:
                extra.setdefault(m, []).extend(pend.pop(0)); issued += 1
        if o.prio == "rot":
            extra.setdefault(2, []).insert(0, f"s_setprio {3 - ((2*kt+1) & 3)}")
            extra.setdefault(5, []).insert(0, f"s_setprio {3 - ((2*kt+2) & 3)}")
        elif o.prio == "rotb":
            extra.setdefault(5, []).insert(0, f"s_setprio {3 - ((kt+1) & 3)}")
        body(g, kt, extra)
    assert not pend
    g.stamp()
    if o.stamps: g("s_memrealtime s[96:97]")
    g("s_nop 0")
    g(f"ds_write_b128 v{vXW}, {r(ACC0,4)}")
    g(f"ds_write_b128 v{vXW}, {r(ACC0+4,4)} offset:1024")
    g(f"ds_write_b32 v{vXW4}, v{ACC0+8} offset:2048")
    exps(g, S1, 12, 16)
    g("s_nop 1")
    smf(g, ACC1, VB[1], S1 + 8)
    g("s_waitcnt lgkmcnt(0)")
    g("s_barrier")
    g(f"ds_read_b128 {r(S0,4)}, v{vXR}")
    g(f"ds_read_b128 {r(S0+4,4)}, v{vXR} offset:1024")
    g(f"ds_read_b32 v{S0+8}, v{vXR4} offset:2048")
    g("s_nop 7")
    g("s_waitcnt lgkmcnt(0)")
    g(f"v_add_f32 v{ACC1+8}, v{ACC1+8}, v{S0+8}")
    for i in range(8): g(f"v_add_f32 v{ACC1+i}, v{ACC1+i}, v{S0+i}")
    g.label("L_fin")
    g(f"v_rcp_f32 v{vT}, v{ACC1+8}")
    g.c("run-time safety check: 2^-40 <= l <= 2^80 (false for NaN/Inf) and all outputs finite")
    g(f"v_cmp_le_f32 vcc, 0x2b800000, v{ACC1+8}")
    g(f"s_mov_b64 s[{sT0}:{sT0+1}], vcc")
    g(f"v_cmp_ge_f32 vcc, 0x67800000, v{ACC1+8}")
    for i in range(8): g(f"v_mul_f32 v{ACC1+i}, v{ACC1+i}, v{vT}")
    g(f"s_and_b64 s[{sT0}:{sT0+1}], s[{sT0}:{sT0+1}], vcc")
    g(f"v_add_f32 v{vT+1}, v{ACC1+0}, v{ACC1+1}")
    g(f"v_add_f32 v{vT+2}, v{ACC1+2}, v{ACC1+3}")
    g(f"v_add_f32 v{vT+3}, v{ACC1+4}, v{ACC1+5}")
    g(f"v_add_f32 v{vT+4}, v{ACC1+6}, v{ACC1+7}")
    g(f"v_add_f32 v{vT+1}, v{vT+1}, v{vT+2}")
    g(f"v_add_f32 v{vT+3}, v{vT+3}, v{vT+4}")
    g(f"v_add_f32 v{vT+1}, v{vT+1}, v{vT+3}")
    g(f"v_mov_b32 v{vT+2}, 0x1f8")
    g(f"v_cmp_class_f32 vcc, v{vT+1}, v{vT+2}")
    g(f"v_cvt_pk_bf16_f32 v{vT+4}, v{ACC1+0}, v{ACC1+1}")
    g(f"v_cvt_pk_bf16_f32 v{vT+5}, v{ACC1+2}, v{ACC1+3}")
    g(f"v_cvt_pk_bf16_f32 v{vT+6}, v{ACC1+4}, v{ACC1+5}")
    g(f"v_cvt_pk_bf16_f32 v{vT+7}, v{ACC1+6}, v{ACC1+7}")
    g(f"s_and_b64 s[{sT0}:{sT0+1}], s[{sT0}:{sT0+1}], vcc")
    if o.force_slow:
        g(f"s_mov_b64 s[{sT0}:{sT0+1}], 0")
    if o.xp != "none":
        g(f"s_mov_b64 s[{sT0}:{sT0+1}], exec")
    g(f"s_cmp_eq_u64 s[{sT0}:{sT0+1}], exec")
    g("s_cbranch_scc0 L_slow")
    g.label("L_store")
    g(f"v_permlane32_swap_b32 v{vT+4}, v{vT+6}")
    g(f"v_permlane32_swap_b32 v{vT+5}, v{vT+7}")
    g(f"buffer_store_dwordx4 {r(vT+4,4)}, v{vF}, s[{SRDO}:{SRDO+3}], s{sQ1OFF} offen")
    if o.stamps:
        g.stamp()
        g("s_memrealtime s[92:93]")
        g("s_waitcnt lgkmcnt(0)")
        g(f"s_lshl_b32 s{sT0}, s2, 3")
        g(f"s_add_u32 s{sT0}, s{sT0}, s{sW}")
        g(f"s_lshl_b32 s{sT0}, s{sT0}, 8")
        g(f"v_mov_b32 v{vT}, s{sT0}")
        regs = [sTS + 2 * i for i in range(g.nst)] + [90, 92, 94, 96]
        for i, sr in enumerate(regs):
            g(f"v_mov_b32 v{vT+2}, s{sr}")
            g(f"v_mov_b32 v{vT+3}, s{sr+1}")
            g(f"global_store_dwordx2 v{vT}, v[{vT+2}:{vT+3}], s[42:43] offset:{8*i}")
            g("s_nop 1")
        sys.stderr.write(f"nstamps={g.nst}\n")
    if o.dbg:
        g("s_memrealtime s[92:93]")
        g("s_getreg_b32 s96, hwreg(HW_REG_XCC_ID)")
        g("s_waitcnt lgkmcnt(0)")
        g(f"s_cmp_lg_u32 s{sW}, 0")
        g("s_cbranch_scc1 L_end")
        g("s_mov_b64 exec, 1")
        g(f"v_mov_b32 v{vT}, 0")
        g(f"v_mov_b32 v{vT+1}, s90")
        g(f"v_not_b32 v{vT+2}, v{vT+1}")
        g(f"v_mov_b32 v{vT+3}, s92")
        g(f"v_not_b32 v{vT+4}, v{vT+3}")
        g(f"v_mov_b32 v{vT+5}, s94")
        g(f"v_not_b32 v{vT+6}, v{vT+5}")
        for i in range(6):
            g(f"global_atomic_umax v{vT}, v{vT+1+i}, s[42:43] offset:{4*i}")
        g("s_and_b32 s96, s96, 7")
        g("s_lshl_b32 s96, s96, 2")
        g(f"v_mov_b32 v{vT}, s96")
        g(f"global_atomic_umax v{vT}, v{vT+2}, s[42:43] offset:32")
    g.label("L_end")
    g("s_endpgm")
    g.label("L_slow")
    g(f"s_cmp_lg_u32 s{sSLOW}, 0")
    g("s_cbranch_scc1 L_store")
    g(f"s_mov_b32 s{sSLOW}, 1")
    g.c("pass 1: true row max over all 2048 keys")
    g(f"v_add_u32 v{vAK}, {L_K}, v{vL16}")
    g(f"v_mov_b32 v{vT}, 0xff800000")
    g(f"s_mov_b32 s{sCNT}, 64")
    g.label("L_s1")
    krd(g, KF[0], 0)
    g("s_waitcnt lgkmcnt(0)")
    qk(g, S0, KF[0], Q1)
    g(f"v_add_u32 v{vAK}, 0x400, v{vAK}")
    g("s_nop 15")
    for i in range(8):
        g(f"v_max3_f32 v{vT}, v{vT}, v{S0+2*i}, v{S0+2*i+1}")
    g(f"s_sub_u32 s{sCNT}, s{sCNT}, 1")
    g(f"s_cmp_lg_u32 s{sCNT}, 0")
    g("s_cbranch_scc1 L_s1")
    g(f"v_mov_b32 v{vT+1}, v{vT}")
    g("s_nop 1")
    g(f"v_permlane32_swap_b32 v{vT}, v{vT+1}")
    g("s_nop 1")
    g(f"v_max_f32 v{vT}, v{vT}, v{vT+1}")
    for i in range(16): g(f"v_sub_f32 v{CB+i}, 0, v{vT}")
    for i in range(16): g(f"v_mov_b32 v{ACC1+i}, 0")
    g.c("pass 2: exp(s - max), PV and row sum")
    g(f"v_add_u32 v{vAK}, {L_K}, v{vL16}")
    g(f"v_and_b32 v{vT}, 15, v0")
    g(f"v_lshlrev_b32 v{vT}, 3, v{vT}")
    g(f"v_bfe_u32 v{vT+1}, v0, 5, 1")
    g(f"v_lshlrev_b32 v{vT+1}, 8, v{vT+1}")
    g(f"v_add_u32 v{vT+1}, {L_V}, v{vT+1}")
    g(f"v_mov_b32 v{vT+2}, {L_ONES + 128}")
    g(f"v_cmp_ne_u32 vcc, 0, v{vINC}")
    g(f"v_mov_b32 v{vT+3}, 0x400")
    g("s_nop 0")
    g(f"v_cndmask_b32 v{vT+1}, v{vT+2}, v{vT+1}, vcc")
    g(f"v_cndmask_b32 v{vINC}, 0, v{vT+3}, vcc")
    g(f"v_add_u32 v{vAV}, v{vT}, v{vT+1}")
    g(f"s_mov_b32 s{sCNT}, 64")
    g.label("L_s2")
    krd(g, KF[0], 0)
    trd(g, VA[0], 0)
    trd(g, VA[0] + 2, 128)
    trd(g, VB[0], 512)
    trd(g, VB[0] + 2, 640)
    g("s_waitcnt lgkmcnt(0)")
    qk(g, S0, KF[0], Q1, r(CB, 16))
    g(f"v_add_u32 v{vAK}, 0x400, v{vAK}")
    g(f"v_add_u32 v{vAV}, v{vINC}, v{vAV}")
    g("s_nop 15")
    exps(g, S0, 0, 16)
    g("s_nop 1")
    smf(g, ACC1, VA[0], S0)
    smf(g, ACC1, VB[0], S0 + 8)
    g(f"s_sub_u32 s{sCNT}, s{sCNT}, 1")
    g(f"s_cmp_lg_u32 s{sCNT}, 0")
    g("s_cbranch_scc1 L_s2")
    g("s_nop 15")
    g("s_branch L_fin")
    g.L.append('.section .rodata,"a"')
    g.L.append(".p2align 6")
    g.L.append(f".amdhsa_kernel {NAME}_kernel")
    g.L.append(f"  .amdhsa_next_free_vgpr {NVGPR + (32 if o.xp == 'smfacc' else 0)}")
    g.L.append(f"  .amdhsa_next_free_sgpr 100")
    g.L.append(f"  .amdhsa_accum_offset {(NVGPR+3)//4*4}")
    g.L.append("  .amdhsa_group_segment_fixed_size 0")
    g.L.append("  .amdhsa_kernarg_size 48")
    g.L.append("  .amdhsa_user_sgpr_count 2")
    g.L.append("  .amdhsa_user_sgpr_kernarg_segment_ptr 1")
    g.L.append("  .amdhsa_system_sgpr_workgroup_id_x 1")
    g.L.append(".end_amdhsa_kernel")
    return "\n".join(g.L) + "\n"

def parse(argv=None):
    ap = argparse.ArgumentParser()
    ap.add_argument("-o", default=f"cdna_kernels/{NAME}.s")
    ap.add_argument("--stamps", action="store_true")
    ap.add_argument("--stampbars", action="store_true")
    ap.add_argument("--force-slow", action="store_true")
    ap.add_argument("--ones", default="two")
    ap.add_argument("--pre", type=int, default=1)
    ap.add_argument("--prio", default="none")
    ap.add_argument("--bars", default="2:2,6:5,18:8")
    ap.add_argument("--dsites", default="1,4")
    ap.add_argument("--xp", default="none")
    ap.add_argument("--dbg", action="store_true")
    a = ap.parse_args(argv)
    a.bars = [tuple(map(int, x.split(":"))) for x in a.bars.split(",")]
    a.dsites = [int(x) for x in a.dsites.split(",")]
    return a
if __name__ == "__main__":
    a = parse()
    open(a.o, "w").write(build(a))
```

```python
import sys, argparse
from gen import HEADER, NAME

L_ONES = 0
L_K = 8192
L_V = L_K + 65536
L_X = L_V + 65536
XSLOT = 4608
LDS_BYTES = L_X + 4 * XSLOT

vF = 1; vL16 = 2; vAK = 3; vAV = 4; vINC = 5; vIDX = 6
vXA = 7; vXB = 8; vQX = 9; vD = 10; vZ = 11
vT = 12
Q0 = 20; Q1 = 24
KF = [28, 32]; VA = [36, 40]; VB = [44, 48]
S0 = 52; S1 = 68; ACC0 = 84; ACC1 = 100
PA = 116; PB = 128
CB = 116
OA = 140; OB = 144
NVGPR = 148
sQ, sK, sV, sO = 4, 6, 8, 10
SRDD, SRDQ, SRDO = 12, 16, 20
sW, sHEAD, sQP, sKH, sREG = 24, 25, 26, 27, 28
sQ0OFF, sQ1OFF, sQOWN = 29, 30, 31
sM = 32
sT0, sT1 = 34, 35
sCNT, sIT, sOFF = 36, 37, 38
sTS = 44

def r(base, n): return f"v[{base}:{base+n-1}]"

class Gen:
    def __init__(self, o):
        self.L = []; self.o = o; self.nst = 0; self.nl = 0
    def __call__(self, s): self.L.append("    " + s)
    def label(self, s): self.L.append(s + ":")
    def c(self, s): self.L.append("    ; " + s)
    def stamp(self, idx=None):
        if self.o.stamps:
            if idx is None:
                idx = self.nst; self.nst += 1
            i = sTS + 2 * idx
            self(f"s_memtime s[{i}:{i+1}]")
            return idx
    def newlabel(self):
        self.nl += 1
        return f"L_t{self.nl}"

def exps(g, S, lo, hi):
    for i in range(lo, hi): g(f"v_exp_f32 v{S+i}, v{S+i}")
def smf(g, acc, A, B): g(f"v_smfmac_f32_32x32x32_bf16 {r(acc,16)}, {r(A,4)}, {r(B,8)}, v{vIDX}")
def qk(g, S, K, Q, C="0"): g(f"v_mfma_f32_32x32x16_bf16 {r(S,16)}, {r(K,4)}, {r(Q,4)}, {C}")
def trd(g, dst, off): g(f"ds_read_b64_tr_b16 {r(dst,2)}, v{vAV} offset:{off}")
def krd(g, dst, off): g(f"ds_read_b128 {r(dst,4)}, v{vAK} offset:{off}")
DMA_A = "s_addk_i32 m0, 0x800"
DMA_B = f"buffer_load_dwordx4 v{vD}, s[{SRDD}:{SRDD+3}], m0 offen lds"
sROT = 39
DMA_A2 = ["s_addk_i32 m0, 0x800", f"s_addk_i32 s{sROT}, 0x800", f"s_and_b32 s{sROT}, s{sROT}, 0x7fff"]
DMA_B2 = f"buffer_load_dwordx4 v{vD}, s[{SRDD}:{SRDD+3}], s{sROT} offen lds"

VPER = 4
def body(g, kt, extra, skipk=False, upto_m3=False):
    f = kt & 1
    last = kt == 31
    vo = ((kt % VPER) + 1) * 1024
    ko = (kt + 2) * 1024
    def X(m):
        for s in extra.get(m, []): g(s)
    if kt > 0:
        exps(g, S1, 12, 16)
        exps(g, S0, 0, 2)
        smf(g, ACC1, VB[f ^ 1], S1 + 8)
    if not last: trd(g, VA[f ^ 1], vo)
    X(0)
    exps(g, S0, 2, 7)
    qk(g, S1, KF[f], Q1)
    if not last: trd(g, VA[f ^ 1] + 2, vo + 128)
    else: g("s_nop 0")
    X(1)
    exps(g, S0, 7, 12)
    smf(g, ACC0, VA[f], S0)
    if kt < 30 and not skipk: krd(g, KF[f], ko)
    else: g("s_nop 0")
    X(2)
    exps(g, S0, 12, 16)
    exps(g, S1, 0, 2)
    smf(g, ACC0, VB[f], S0 + 8)
    if upto_m3: return
    trd(g, VB[f ^ 1], vo + 512)
    X(3)
    exps(g, S1, 2, 7)
    qk(g, S0, KF[f ^ 1], Q0)
    trd(g, VB[f ^ 1] + 2, vo + 640)
    X(4)
    exps(g, S1, 7, 12)
    smf(g, ACC1, VA[f], S1)
    g("s_waitcnt lgkmcnt(0)")
    X(5)
    if kt % VPER == VPER - 1:
        g(f"v_add_u32 v{vAV}, v{vINC}, v{vAV}")

def scale_q(g, Q):
    for i in range(4):
        a, b = vT + 2 * i, vT + 2 * i + 1
        g(f"v_lshlrev_b32 v{a}, 16, v{Q+i}")
        g(f"v_and_b32 v{b}, 0xffff0000, v{Q+i}")
    for i in range(8):
        g(f"v_mul_f32 v{vT+i}, 0x3eb8aa3b, v{vT+i}")
    for i in range(4):
        g(f"v_cvt_pk_bf16_f32 v{Q+i}, v{vT+2*i}, v{vT+2*i+1}")

def prio_hi_f(g):
    l = g.newlabel()
    g(f"s_cmp_eq_u32 s{sKH}, 0")
    g(f"s_cbranch_scc1 {l}")
    g("s_setprio 1")
    g.label(l)

def fin(g, acc, P, O, soff, rc):
    if P is not None:
        g(f"v_add_f32 v{acc+8}, v{acc+8}, v{P+8}")
        g(f"v_pk_add_f32 {r(acc,2)}, {r(acc,2)}, {r(P,2)}")
        g(f"v_rcp_f32 v{rc}, v{acc+8}")
        for i in range(1, 4): g(f"v_pk_add_f32 {r(acc+2*i,2)}, {r(acc+2*i,2)}, {r(P+2*i,2)}")
    else:
        g(f"v_rcp_f32 v{rc}, v{acc+8}")
        g("s_nop 0")
    for i in range(4): g(f"v_pk_mul_f32 {r(acc+2*i,2)}, {r(acc+2*i,2)}, {r(rc,2)} op_sel_hi:[1,0]")
    for i in (0, 2, 1, 3): g(f"v_cvt_pk_bf16_f32 v{O+i}, v{acc+2*i}, v{acc+2*i+1}")
    g("s_nop 0")
    g(f"v_permlane32_swap_b32 v{O}, v{O+2}")
    g(f"v_permlane32_swap_b32 v{O+1}, v{O+3}")
    if g.o.stampfin and P is not None: g.stamp(g.fs); g.fs += 1
    g(f"buffer_store_dwordx4 {r(O,4)}, v{vF}, s[{SRDO}:{SRDO+3}], s{soff} offen{g.o.stflags}")
    if g.o.stampfin and P is not None: g.stamp(g.fs); g.fs += 1

def build(o):
    g = Gen(o)
    g.L.append(HEADER.rstrip("\n"))
    g.L.append(f"; @launch grid=(256,1,1) block=(512,1,1) lds={LDS_BYTES}")
    g.L.append('.amdgcn_target "amdgcn-amd-amdhsa--gfx950"')
    g.L.append(".text")
    g.L.append(f".globl {NAME}_kernel")
    g.L.append(".p2align 8")
    g.L.append(f".type {NAME}_kernel,@function")
    g.label(f"{NAME}_kernel")
    g("s_cmp_ge_u32 s2, 256")
    g("s_cbranch_scc1 L_end")
    g("s_load_dwordx8 s[4:11], s[0:1], 0")
    if o.stamps or o.lite:
        g(f"s_load_dwordx2 s[42:43], s[0:1], 40")
        g("s_memrealtime s[90:91]")
    g.stamp()
    g(f"v_lshrrev_b32 v{vT}, 6, v0")
    g(f"v_and_b32 v{vT+1}, 31, v0")
    g(f"v_readfirstlane_b32 s{sW}, v{vT}")
    g(f"v_and_b32 v{vT+2}, 63, v0")
    g(f"v_lshlrev_b32 v{vT+1}, 5, v{vT+1}")
    g(f"v_bfe_u32 v{vT+3}, v0, 5, 1")
    g(f"v_lshl_add_u32 v{vF}, v{vT+3}, 4, v{vT+1}")
    g(f"v_lshlrev_b32 v{vL16}, 4, v{vT+2}")
    g.c("head = (wg&7)*4 + (wg>>6), qblock = (wg>>3)&7, qp = w&3, kh = w>>2")
    g(f"s_and_b32 s{sHEAD}, s2, 7")
    g(f"s_lshr_b32 s{sT0}, s2, 6")
    g(f"s_lshl_b32 s{sHEAD}, s{sHEAD}, 2")
    g(f"s_add_u32 s{sHEAD}, s{sHEAD}, s{sT0}")
    g(f"s_lshl_b32 s{sHEAD}, s{sHEAD}, 16")
    g(f"s_bfe_u32 s{sT0}, s2, 0x30003")
    g(f"s_lshl_b32 s{sT0}, s{sT0}, 13")
    g(f"s_add_u32 s{sQ0OFF}, s{sT0}, s{sHEAD}")
    g(f"s_and_b32 s{sQP}, s{sW}, 3")
    g(f"s_lshr_b32 s{sKH}, s{sW}, 2")
    g(f"s_lshl_b32 s{sT0}, s{sQP}, 11")
    g(f"s_add_u32 s{sQ0OFF}, s{sQ0OFF}, s{sT0}")
    g(f"s_lshl_b32 s{sT0}, s{sKH}, 10")
    g(f"s_add_u32 s{sQOWN}, s{sQ0OFF}, s{sT0}")
    g(f"s_mov_b32 s{SRDQ+2}, 0x200000")
    g(f"s_mov_b32 s{SRDQ+3}, 0x20000")
    g(f"s_mov_b32 s{SRDD+2}, {0x8000 if o.rot else L_V + 65536}")
    g(f"s_mov_b32 s{SRDD+3}, 0x20000")
    g(f"s_lshl_b32 s{sT0}, s{sKH}, 15")
    g(f"s_lshr_b32 s{sT1}, s{sQP}, 1")
    g(f"s_lshl_b32 s{sT1}, s{sT1}, 10")
    g(f"s_add_u32 s{sT0}, s{sT0}, s{sT1}")
    g(f"s_and_b32 s{sREG}, s{sW}, 1")
    g(f"s_lshl_b32 s{sREG}, s{sREG}, 16")
    g(f"s_add_u32 s{sREG}, s{sREG}, {L_K}")
    g(f"s_add_u32 m0, s{sT0}, s{sREG}")
    if o.rot:
        g(f"s_lshr_b32 s{sROT}, s{sHEAD}, 5")
        g(f"s_and_b32 s{sROT}, s{sROT}, 0x7800")
        g(f"s_add_u32 s{sROT}, s{sROT}, s{sT1}")
        g(f"s_lshl_b32 s{sREG}, s{sKH}, 15")
        g(f"s_add_u32 s{sREG}, s{sREG}, s{sHEAD}")
    g(f"s_bitcmp1_b32 s{sW}, 0")
    g(f"s_cselect_b64 s[{sM}:{sM+1}], -1, 0")
    g(f"v_cndmask_b32 v{vD}, v{vF}, v{vL16}, s[{sM}:{sM+1}]")
    g("s_waitcnt lgkmcnt(0)")
    g.stamp()
    g(f"s_mov_b32 s{SRDQ}, s{sQ}")
    g(f"s_mov_b32 s{SRDQ+1}, s{sQ+1}")
    g(f"s_cselect_b64 s[{SRDD}:{SRDD+1}], s[{sV}:{sV+1}], s[{sK}:{sK+1}]")
    g(f"buffer_load_dwordx4 {r(Q0,4)}, v{vF}, s[{SRDQ}:{SRDQ+3}], s{sQOWN} offen")
    if o.rot:
        g(f"s_add_u32 s{SRDD}, s{SRDD}, s{sREG}")
        g(f"s_addc_u32 s{SRDD+1}, s{SRDD+1}, 0")
        g(DMA_B2)
    else:
        g(f"s_add_u32 s{SRDD}, s{SRDD}, s{sHEAD}")
        g(f"s_addc_u32 s{SRDD+1}, s{SRDD+1}, 0")
        g(f"s_sub_u32 s{SRDD}, s{SRDD}, s{sREG}")
        g(f"s_subb_u32 s{SRDD+1}, s{SRDD+1}, 0")
        g(DMA_B)
    g.stamp()
    g(f"s_mov_b32 s{SRDO}, s{sO}")
    g(f"s_mov_b32 s{SRDO+1}, s{sO+1}")
    g(f"s_mov_b32 s{SRDO+2}, 0x200000")
    g(f"s_mov_b32 s{SRDO+3}, 0x20000")
    g(f"s_add_u32 s{sQ1OFF}, s{sQ0OFF}, 1024")
    g.c("constant rows for the row sum (A rows 16 and 20 = 1.0, other padding rows 0)")
    g(f"v_and_b32 v{vT+4}, 1, v0")
    g(f"v_subrev_u32 v{vT+4}, 1, v{vT+4}")
    g(f"v_and_b32 v{vT+4}, 0x3f80, v{vT+4}")
    g(f"v_mov_b32 v{vT+5}, 0")
    g(f"v_mov_b32 v{vT+6}, v{vT+4}")
    g(f"v_mov_b32 v{vT+7}, 0")
    g(f"s_lshl_b32 s{sT0}, s{sW}, 10")
    g(f"v_add_u32 v{vT}, s{sT0}, v{vL16}")
    g(f"ds_write_b128 v{vT}, {r(vT+4,4)} offset:{L_ONES}")
    g(f"v_add_u32 v{vZ}, {L_X}, v{vT}")
    g(f"s_lshl_b32 s{sT0}, s{sQP}, 10")
    g(f"s_add_u32 s{sT0}, s{sT0}, {L_X}")
    g(f"v_add_u32 v{vQX}, s{sT0}, v{vL16}")
    g(f"s_lshl_b32 s{sT0}, s{sKH}, 15")
    g(f"s_add_u32 s{sT1}, s{sT0}, {L_K}")
    g(f"v_add_u32 v{vAK}, s{sT1}, v{vL16}")
    g(f"v_and_b32 v{vT}, 15, v0")
    g(f"v_lshlrev_b32 v{vT}, 3, v{vT}")
    g(f"v_bfe_u32 v{vT+1}, v0, 5, 1")
    g(f"v_lshlrev_b32 v{vT+1}, 8, v{vT+1}")
    g(f"s_add_u32 s{sT1}, s{sT0}, {L_V}")
    g(f"v_add_u32 v{vT+1}, s{sT1}, v{vT+1}")
    g(f"v_mov_b32 v{vT+2}, {L_ONES + 128}")
    g(f"v_and_b32 v{vT+3}, 16, v0")
    g(f"v_cmp_eq_u32 vcc, 0, v{vT+3}")
    g(f"v_mov_b32 v{vT+3}, {VPER*1024}")
    g(f"v_mov_b32 v{vIDX}, 0xdddddddd")
    g(f"v_cndmask_b32 v{vT+1}, v{vT+2}, v{vT+1}, vcc")
    g(f"v_cndmask_b32 v{vINC}, 0, v{vT+3}, vcc")
    g(f"v_add_u32 v{vAV}, v{vT}, v{vT+1}")
    npre = o.pre
    for i in range(npre):
        if o.rot:
            for x in DMA_A2: g(x)
            g(DMA_B2)
        else:
            g(DMA_A); g("s_nop 0"); g(DMA_B)
    g(f"s_mul_i32 s{sT0}, s{sQP}, {XSLOT}")
    g(f"s_add_u32 s{sT0}, s{sT0}, {L_X}")
    g(f"v_lshrrev_b32 v{vT}, 2, v{vL16}")
    g(f"v_add_u32 v{vXA}, s{sT0}, v{vL16}")
    g(f"v_add_u32 v{vXB}, s{sT0}, v{vT}")
    for i in range(9): g(f"v_mov_b32 v{ACC0+i}, 0")
    for i in range(9): g(f"v_mov_b32 v{ACC1+i}, 0")
    if o.zacc:
        for i in range(9, 16): g(f"v_mov_b32 v{ACC0+i}, 0")
        for i in range(9, 16): g(f"v_mov_b32 v{ACC1+i}, 0")
    g.stamp()
    g(f"s_waitcnt vmcnt({1 + npre})")
    g.stamp()
    scale_q(g, Q0)
    g(f"ds_write_b128 v{vZ}, {r(Q0,4)}")
    g(f"s_waitcnt vmcnt({npre}) lgkmcnt(0)")
    g.stamp()
    g("s_barrier")
    g.stamp()
    if o.stamps: g("s_memrealtime s[94:95]")
    g(f"ds_read_b128 {r(Q0,4)}, v{vQX}")
    krd(g, KF[0], 0)
    g(f"ds_read_b128 {r(Q1,4)}, v{vQX} offset:4096")
    trd(g, VA[0], 0)
    trd(g, VA[0] + 2, 128)
    trd(g, VB[0], 512)
    trd(g, VB[0] + 2, 640)
    krd(g, KF[1], 1024)
    g("s_waitcnt lgkmcnt(6)" if not o.stamps else "s_waitcnt lgkmcnt(0)")
    qk(g, S0, KF[0], Q0)
    g("s_waitcnt lgkmcnt(0)")
    g("s_nop 10")
    exps(g, S0, 0, 2)
    issued = 1 + npre
    covered = 1
    bars = dict(o.bars)
    flips = set(o.flips)
    warm_done = False
    for kt in range(32):
        extra = {}
        if kt in bars:
            need = bars[kt]
            assert need <= issued
            g(f"s_waitcnt vmcnt({issued - need + (1 if warm_done else 0)})")
            g("s_barrier")
            covered = need
            if o.stampbars: g.stamp()
            if kt == 1:
                krd(g, KF[0], 2048)
                extra.setdefault(3, []).append("s_waitcnt lgkmcnt(4)")
            if o.prio: prio_hi_f(g)
        if o.stampat and kt in o.stampat and kt not in bars: g.stamp()
        if kt >= 1: assert min(kt + 2, 31) < 2 * covered, (kt, covered)
        for a, b in ((0, 1), (2, 3), (4, 5))[:o.dper]:
            if issued < 16:
                extra.setdefault(a, []).extend(DMA_A2 if o.rot else [DMA_A])
                extra.setdefault(b, []).append(DMA_B2 if o.rot else DMA_B)
                issued += 1
            elif o.warm and not warm_done:
                extra.setdefault(b, []).append(f"buffer_load_dword v{vZ}, off, s[{SRDO}:{SRDO+3}], s{sQ0OFF}")
                warm_done = True
        if o.prio:
            if 2 * kt + 1 in flips: extra.setdefault(2, []).append("s_setprio 0")
            if 2 * kt + 2 in flips: extra.setdefault(5, []).append("s_setprio 0")
        body(g, kt, extra, skipk=(kt == 0), upto_m3=(kt == 31))
    assert issued == 16
    g(f"s_cmp_eq_u32 s{sKH}, 0")
    g("s_cbranch_scc1 L_give")
    g.c("finisher")
    g("s_barrier")
    g(f"ds_read_b128 {r(PA,4)}, v{vXA}")
    g(f"ds_read_b128 {r(PA+4,4)}, v{vXA} offset:1024")
    g(f"ds_read_b32 v{PA+8}, v{vXB} offset:2048")
    g(f"ds_read_b128 {r(PB,4)}, v{vXA} offset:2304")
    g(f"ds_read_b128 {r(PB+4,4)}, v{vXA} offset:3328")
    g(f"ds_read_b32 v{PB+8}, v{vXB} offset:{2304+2048}")
    exps(g, S1, 2, 12)
    smf(g, ACC1, VA[1], S1)
    exps(g, S1, 12, 16)
    g("s_waitcnt lgkmcnt(0)" + (" vmcnt(0)" if o.warm else ""))
    g("s_nop 0")
    smf(g, ACC1, VB[1], S1 + 8)
    i_end = g.stamp()
    if o.stamps: g("s_memrealtime s[96:97]")
    g.fs = 1
    fin(g, ACC0, PA, OA, sQ0OFF, vT)
    fin(g, ACC1, PB, OB, sQ1OFF, vT + 2)
    g.c("run-time safety check: 1 <= l <= 2^80 and all outputs finite, else exact true-max path")
    g(f"v_min_f32 v{vT+4}, v{ACC0+8}, v{ACC1+8}")
    g(f"v_max_f32 v{vT+5}, v{ACC0+8}, v{ACC1+8}")
    g(f"v_cmp_le_f32 vcc, 1.0, v{vT+4}")
    g(f"v_pk_add_f32 {r(ACC0,2)}, {r(ACC0,2)}, {r(ACC0+2,2)}")
    g(f"s_mov_b64 s[{sT0}:{sT0+1}], vcc")
    g(f"v_cmp_ge_f32 vcc, 0x67800000, v{vT+5}")
    g(f"v_pk_add_f32 {r(ACC0+4,2)}, {r(ACC0+4,2)}, {r(ACC0+6,2)}")
    g(f"v_pk_add_f32 {r(ACC1,2)}, {r(ACC1,2)}, {r(ACC1+2,2)}")
    g(f"s_and_b64 s[{sT0}:{sT0+1}], s[{sT0}:{sT0+1}], vcc")
    g(f"v_pk_add_f32 {r(ACC1+4,2)}, {r(ACC1+4,2)}, {r(ACC1+6,2)}")
    g(f"v_pk_add_f32 {r(ACC0,2)}, {r(ACC0,2)}, {r(ACC0+4,2)}")
    g(f"v_pk_add_f32 {r(ACC1,2)}, {r(ACC1,2)}, {r(ACC1+4,2)}")
    g(f"v_pk_add_f32 {r(ACC0,2)}, {r(ACC0,2)}, {r(ACC1,2)}")
    g(f"v_mov_b32 v{vT+4}, 0x1f8")
    g(f"v_add_f32 v{ACC0}, v{ACC0}, v{ACC0+1}")
    g(f"v_cmp_class_f32 vcc, v{ACC0}, v{vT+4}")
    g(f"s_and_b64 s[{sT0}:{sT0+1}], s[{sT0}:{sT0+1}], vcc")
    if o.force_slow:
        g(f"s_mov_b64 s[{sT0}:{sT0+1}], 0")
    g(f"s_cmp_eq_u64 s[{sT0}:{sT0+1}], exec")
    g("s_cbranch_scc0 L_slow")
    def stamp_out():
        if o.lite:
            g("s_waitcnt vmcnt(0)")
            g("s_memrealtime s[92:93]")
            g(f"s_lshl_b32 s{sT0}, s2, 3")
            g(f"s_add_u32 s{sT0}, s{sT0}, s{sW}")
            g(f"s_lshl_b32 s{sT0}, s{sT0}, 3")
            g(f"v_mov_b32 v{vT}, s{sT0}")
            g("s_waitcnt lgkmcnt(0)")
            g(f"v_mov_b32 v{vT+2}, s90")
            g(f"v_mov_b32 v{vT+3}, s92")
            g(f"global_store_dwordx2 v{vT}, v[{vT+2}:{vT+3}], s[42:43]")
        if not o.stamps: return
        g.stamp(i_end + 1)
        g("s_memrealtime s[92:93]")
        g("s_waitcnt lgkmcnt(0)")
        g(f"s_lshl_b32 s{sT0}, s2, 3")
        g(f"s_add_u32 s{sT0}, s{sT0}, s{sW}")
        g(f"s_lshl_b32 s{sT0}, s{sT0}, 8")
        g(f"v_mov_b32 v{vT}, s{sT0}")
        regs = [sTS + 2 * i for i in range(i_end + 2)] + [90, 92, 94, 96]
        for i, sr in enumerate(regs):
            g(f"v_mov_b32 v{vT+2}, s{sr}")
            g(f"v_mov_b32 v{vT+3}, s{sr+1}")
            g(f"global_store_dwordx2 v{vT}, v[{vT+2}:{vT+3}], s[42:43] offset:{8*i}")
            g("s_nop 1")
    stamp_out()
    g.label("L_end")
    g("s_endpgm")
    g.label("L_give")
    g.c("giver: hand both partial accumulators to the partner wave")
    exps(g, S1, 2, 12)
    smf(g, ACC1, VA[1], S1)
    g(f"ds_write_b128 v{vXA}, {r(ACC0,4)}")
    g(f"ds_write_b128 v{vXA}, {r(ACC0+4,4)} offset:1024")
    g(f"ds_write_b32 v{vXB}, v{ACC0+8} offset:2048")
    exps(g, S1, 12, 16)
    g("s_nop 1")
    smf(g, ACC1, VB[1], S1 + 8)
    if o.stamps:
        g.stamp(i_end)
        g("s_memrealtime s[96:97]")
    g("s_nop 11")
    g(f"ds_write_b128 v{vXA}, {r(ACC1,4)} offset:2304")
    g(f"ds_write_b128 v{vXA}, {r(ACC1+4,4)} offset:3328")
    g(f"ds_write_b32 v{vXB}, v{ACC1+8} offset:{2304+2048}")
    g("s_waitcnt lgkmcnt(0)")
    g("s_barrier")
    stamp_out()
    g("s_endpgm")
    if o.stamps: sys.stderr.write(f"nstamps={i_end+2}\n")
    g.label("L_slow")
    g("s_waitcnt vmcnt(0)")
    g(f"s_mov_b32 s{sIT}, 0")
    g(f"s_mov_b32 s{sOFF}, s{sQ0OFF}")
    g(f"v_cmp_ne_u32 vcc, 0, v{vINC}")
    g(f"v_mov_b32 v{vT+3}, 0x400")
    g("s_nop 0")
    g(f"v_cndmask_b32 v{vINC}, 0, v{vT+3}, vcc")
    g.label("L_s0")
    g.c("pass 1: true row max over all 2048 keys")
    g(f"v_add_u32 v{vAK}, {L_K}, v{vL16}")
    g(f"v_mov_b32 v{vT}, 0xff800000")
    g(f"s_mov_b32 s{sCNT}, 64")
    g.label("L_s1")
    krd(g, KF[0], 0)
    g("s_waitcnt lgkmcnt(0)")
    qk(g, S0, KF[0], Q0)
    g(f"v_add_u32 v{vAK}, 0x400, v{vAK}")
    g("s_nop 15")
    for i in range(8):
        g(f"v_max3_f32 v{vT}, v{vT}, v{S0+2*i}, v{S0+2*i+1}")
    g(f"s_sub_u32 s{sCNT}, s{sCNT}, 1")
    g(f"s_cmp_lg_u32 s{sCNT}, 0")
    g("s_cbranch_scc1 L_s1")
    g(f"v_mov_b32 v{vT+1}, v{vT}")
    g("s_nop 1")
    g(f"v_permlane32_swap_b32 v{vT}, v{vT+1}")
    g("s_nop 1")
    g(f"v_max_f32 v{vT}, v{vT}, v{vT+1}")
    for i in range(16): g(f"v_sub_f32 v{CB+i}, 0, v{vT}")
    for i in range(16): g(f"v_mov_b32 v{ACC1+i}, 0")
    g.c("pass 2: exp(s - max), PV and row sum")
    g(f"v_add_u32 v{vAK}, {L_K}, v{vL16}")
    g(f"v_and_b32 v{vT}, 15, v0")
    g(f"v_lshlrev_b32 v{vT}, 3, v{vT}")
    g(f"v_bfe_u32 v{vT+1}, v0, 5, 1")
    g(f"v_lshlrev_b32 v{vT+1}, 8, v{vT+1}")
    g(f"v_add_u32 v{vT+1}, {L_V}, v{vT+1}")
    g(f"v_mov_b32 v{vT+2}, {L_ONES + 128}")
    g(f"v_cmp_ne_u32 vcc, 0, v{vINC}")
    g("s_nop 1")
    g(f"v_cndmask_b32 v{vT+1}, v{vT+2}, v{vT+1}, vcc")
    g(f"v_add_u32 v{vAV}, v{vT}, v{vT+1}")
    g(f"s_mov_b32 s{sCNT}, 64")
    g.label("L_s2")
    krd(g, KF[0], 0)
    trd(g, VA[0], 0)
    trd(g, VA[0] + 2, 128)
    trd(g, VB[0], 512)
    trd(g, VB[0] + 2, 640)
    g("s_waitcnt lgkmcnt(0)")
    qk(g, S0, KF[0], Q0, r(CB, 16))
    g(f"v_add_u32 v{vAK}, 0x400, v{vAK}")
    g(f"v_add_u32 v{vAV}, v{vINC}, v{vAV}")
    g("s_nop 15")
    exps(g, S0, 0, 16)
    g("s_nop 1")
    smf(g, ACC1, VA[0], S0)
    smf(g, ACC1, VB[0], S0 + 8)
    g(f"s_sub_u32 s{sCNT}, s{sCNT}, 1")
    g(f"s_cmp_lg_u32 s{sCNT}, 0")
    g("s_cbranch_scc1 L_s2")
    g("s_nop 15")
    fin(g, ACC1, None, OA, sOFF, vT)
    g(f"s_cmp_lg_u32 s{sIT}, 0")
    g("s_cbranch_scc1 L_end2")
    g(f"s_mov_b32 s{sIT}, 1")
    g(f"s_mov_b32 s{sOFF}, s{sQ1OFF}")
    for i in range(4): g(f"v_mov_b32 v{Q0+i}, v{Q1+i}")
    g("s_branch L_s0")
    g.label("L_end2")
    g("s_endpgm")
    g.L.append('.section .rodata,"a"')
    g.L.append(".p2align 6")
    g.L.append(f".amdhsa_kernel {NAME}_kernel")
    g.L.append(f"  .amdhsa_next_free_vgpr {NVGPR}")
    g.L.append(f"  .amdhsa_next_free_sgpr 100")
    g.L.append(f"  .amdhsa_accum_offset {(NVGPR+3)//4*4}")
    g.L.append("  .amdhsa_group_segment_fixed_size 0")
    g.L.append("  .amdhsa_kernarg_size 48")
    g.L.append("  .amdhsa_user_sgpr_count 2")
    g.L.append("  .amdhsa_user_sgpr_kernarg_segment_ptr 1")
    g.L.append("  .amdhsa_system_sgpr_workgroup_id_x 1")
    g.L.append(".end_amdhsa_kernel")
    return "\n".join(g.L) + "\n"

def parse(argv=None):
    ap = argparse.ArgumentParser()
    ap.add_argument("-o", default=f"cdna_kernels/{NAME}.s")
    ap.add_argument("--stamps", action="store_true")
    ap.add_argument("--stampbars", action="store_true")
    ap.add_argument("--force-slow", action="store_true")
    ap.add_argument("--pre", type=int, default=3)
    ap.add_argument("--dper", type=int, default=3)
    ap.add_argument("--prio", type=int, default=1)
    ap.add_argument("--warm", type=int, default=0)
    ap.add_argument("--zacc", type=int, default=1)
    ap.add_argument("--bars", default="1:4,6:8,14:16")
    ap.add_argument("--flips", default="11,26,57")
    ap.add_argument("--stampat", default="")
    ap.add_argument("--stampfin", action="store_true")
    ap.add_argument("--lite", action="store_true")
    ap.add_argument("--rot", type=int, default=0)
    ap.add_argument("--stflags", default="")
    a = ap.parse_args(argv)
    a.bars = [tuple(map(int, x.split(":"))) for x in a.bars.split(",")]
    a.flips = [int(x) for x in a.flips.split(",")]
    a.stampat = [int(x) for x in a.stampat.split(",")] if a.stampat else []
    return a
if __name__ == "__main__":
    a = parse()
    open(a.o, "w").write(build(a))
```

```python
import sys, argparse
from gen import HEADER, NAME

L_ONES = 0
L_K = 8192
L_V = L_K + 65536
L_X = L_V + 65536
XSLOT = 4608
LDS_BYTES = L_X + 4 * XSLOT

vF = 1; vL16 = 2; vAK = 3; vAV = 4; vINC = 5; vIDX = 6
vXA = 7; vXB = 8; vQX = 9; vD = 10; vZ = 11
vT = 12
Q0 = 20; Q1 = 24
KF = [28, 32]; VA = [36, 40]; VB = [44, 48]
S0 = 52; S1 = 68; ACC0 = 84; ACC1 = 100
PA = 116; PB = 128
CB = 116
OA = 140; OB = 144
NVGPR = 148
sQ, sK, sV, sO = 4, 6, 8, 10
SRDD, SRDQ, SRDO = 12, 16, 20
sW, sHEAD, sQP, sKH, sREG = 24, 25, 26, 27, 28
sQ0OFF, sQ1OFF, sQOWN = 29, 30, 31
sM = 32
sT0, sT1 = 34, 35
sCNT, sIT, sOFF = 36, 37, 38
sTS = 44

def r(base, n): return f"v[{base}:{base+n-1}]"

class Gen:
    def __init__(self, o):
        self.L = []; self.o = o; self.nst = 0; self.nl = 0
    def __call__(self, s): self.L.append("    " + s)
    def label(self, s): self.L.append(s + ":")
    def c(self, s): self.L.append("    ; " + s)
    def stamp(self, idx=None):
        if self.o.stamps:
            if idx is None:
                idx = self.nst; self.nst += 1
            i = sTS + 2 * idx
            self(f"s_memtime s[{i}:{i+1}]")
            return idx
    def newlabel(self):
        self.nl += 1
        return f"L_t{self.nl}"

def exps(g, S, lo, hi):
    for i in range(lo, hi): g(f"v_exp_f32 v{S+i}, v{S+i}")
def smf(g, acc, A, B): g(f"v_smfmac_f32_32x32x32_bf16 {r(acc,16)}, {r(A,4)}, {r(B,8)}, v{vIDX}")
def qk(g, S, K, Q, C="0"): g(f"v_mfma_f32_32x32x16_bf16 {r(S,16)}, {r(K,4)}, {r(Q,4)}, {C}")
def trd(g, dst, off): g(f"ds_read_b64_tr_b16 {r(dst,2)}, v{vAV} offset:{off}")
def krd(g, dst, off): g(f"ds_read_b128 {r(dst,4)}, v{vAK} offset:{off}")
DMA_A = "s_addk_i32 m0, 0x800"
DMA_B = f"buffer_load_dwordx4 v{vD}, s[{SRDD}:{SRDD+3}], m0 offen lds"
sROT = 39
DMA_A2 = ["s_addk_i32 m0, 0x800", f"s_addk_i32 s{sROT}, 0x800", f"s_and_b32 s{sROT}, s{sROT}, 0x7fff"]
DMA_B2 = f"buffer_load_dwordx4 v{vD}, s[{SRDD}:{SRDD+3}], s{sROT} offen lds"

VPER = 4
def body(g, kt, extra, skipk=False, upto_m3=False):
    f = kt & 1
    last = kt == 31
    vo = ((kt % VPER) + 1) * 1024
    ko = (kt + 2) * 1024
    def X(m):
        for s in extra.get(m, []): g(s)
    if kt > 0:
        exps(g, S1, 12, 16)
        exps(g, S0, 0, 2)
        smf(g, ACC1, VB[f ^ 1], S1 + 8)
    if not last: trd(g, VA[f ^ 1], vo)
    X(0)
    exps(g, S0, 2, 7)
    qk(g, S1, KF[f], Q1)
    if not last: trd(g, VA[f ^ 1] + 2, vo + 128)
    else: g("s_nop 0")
    X(1)
    exps(g, S0, 7, 12)
    smf(g, ACC0, VA[f], S0)
    if kt < 30 and not skipk: krd(g, KF[f], ko)
    else: g("s_nop 0")
    X(2)
    exps(g, S0, 12, 16)
    exps(g, S1, 0, 2)
    smf(g, ACC0, VB[f], S0 + 8)
    if upto_m3: return
    trd(g, VB[f ^ 1], vo + 512)
    X(3)
    exps(g, S1, 2, 7)
    qk(g, S0, KF[f ^ 1], Q0)
    trd(g, VB[f ^ 1] + 2, vo + 640)
    X(4)
    exps(g, S1, 7, 12)
    smf(g, ACC1, VA[f], S1)
    g("s_waitcnt lgkmcnt(0)")
    X(5)
    if kt % VPER == VPER - 1:
        g(f"v_add_u32 v{vAV}, v{vINC}, v{vAV}")

def body0(g, extra):
    st = g.o.stamps
    def X(m):
        for s in extra.get(m, []): g(s)
    X(0)
    g("s_waitcnt lgkmcnt(5)" if not st else "s_waitcnt lgkmcnt(0)")
    qk(g, S1, KF[0], Q1)
    X(1)
    g("s_waitcnt lgkmcnt(3)" if not st else "s_nop 0")
    smf(g, ACC0, VA[0], S0)
    X(2)
    g("s_waitcnt lgkmcnt(0)")
    smf(g, ACC0, VB[0], S0 + 8)
    trd(g, VA[1], 1024)
    trd(g, VA[1] + 2, 1024 + 128)
    X(3)
    g("s_nop 5")
    exps(g, S1, 0, 7)
    qk(g, S0, KF[1], Q0)
    trd(g, VB[1], 1024 + 512)
    trd(g, VB[1] + 2, 1024 + 640)
    X(4)
    exps(g, S1, 7, 12)
    smf(g, ACC1, VA[0], S1)
    g("s_waitcnt lgkmcnt(0)")
    X(5)

def scale_q(g, Q):
    for i in range(4):
        a, b = vT + 2 * i, vT + 2 * i + 1
        g(f"v_lshlrev_b32 v{a}, 16, v{Q+i}")
        g(f"v_and_b32 v{b}, 0xffff0000, v{Q+i}")
    for i in range(8):
        g(f"v_mul_f32 v{vT+i}, 0x3eb8aa3b, v{vT+i}")
    for i in range(4):
        g(f"v_cvt_pk_bf16_f32 v{Q+i}, v{vT+2*i}, v{vT+2*i+1}")

def prio_hi_f(g):
    l = g.newlabel()
    g(f"s_cmp_eq_u32 s{sKH}, 0")
    g(f"s_cbranch_scc1 {l}")
    g("s_setprio 1")
    g.label(l)

def fin(g, acc, P, O, soff, rc):
    if P is not None:
        g(f"v_add_f32 v{acc+8}, v{acc+8}, v{P+8}")
        g(f"v_pk_add_f32 {r(acc,2)}, {r(acc,2)}, {r(P,2)}")
        g(f"v_rcp_f32 v{rc}, v{acc+8}")
        for i in range(1, 4): g(f"v_pk_add_f32 {r(acc+2*i,2)}, {r(acc+2*i,2)}, {r(P+2*i,2)}")
    else:
        g(f"v_rcp_f32 v{rc}, v{acc+8}")
        g("s_nop 0")
    for i in range(4): g(f"v_pk_mul_f32 {r(acc+2*i,2)}, {r(acc+2*i,2)}, {r(rc,2)} op_sel_hi:[1,0]")
    for i in (0, 2, 1, 3): g(f"v_cvt_pk_bf16_f32 v{O+i}, v{acc+2*i}, v{acc+2*i+1}")
    g("s_nop 0")
    g(f"v_permlane32_swap_b32 v{O}, v{O+2}")
    g(f"v_permlane32_swap_b32 v{O+1}, v{O+3}")
    if g.o.stampfin and P is not None: g.stamp(g.fs); g.fs += 1
    g(f"buffer_store_dwordx4 {r(O,4)}, v{vF}, s[{SRDO}:{SRDO+3}], s{soff} offen{g.o.stflags}")
    if g.o.stampfin and P is not None: g.stamp(g.fs); g.fs += 1

def build(o):
    g = Gen(o)
    g.L.append(HEADER.rstrip("\n"))
    g.L.append(f"; @launch grid=(256,1,1) block=(512,1,1) lds={LDS_BYTES}")
    g.L.append('.amdgcn_target "amdgcn-amd-amdhsa--gfx950"')
    g.L.append(".text")
    g.L.append(f".globl {NAME}_kernel")
    g.L.append(".p2align 8")
    g.L.append(f".type {NAME}_kernel,@function")
    g.label(f"{NAME}_kernel")
    g("s_cmp_ge_u32 s2, 256")
    g("s_cbranch_scc1 L_end")
    g("s_load_dwordx8 s[4:11], s[0:1], 0")
    if o.stamps or o.lite:
        g(f"s_load_dwordx2 s[42:43], s[0:1], 40")
        g("s_memrealtime s[90:91]")
    g.stamp()
    g(f"v_lshrrev_b32 v{vT}, 6, v0")
    g(f"v_and_b32 v{vT+1}, 31, v0")
    g(f"v_readfirstlane_b32 s{sW}, v{vT}")
    g(f"v_and_b32 v{vT+2}, 63, v0")
    g(f"v_lshlrev_b32 v{vT+1}, 5, v{vT+1}")
    g(f"v_bfe_u32 v{vT+3}, v0, 5, 1")
    g(f"v_lshl_add_u32 v{vF}, v{vT+3}, 4, v{vT+1}")
    g(f"v_lshlrev_b32 v{vL16}, 4, v{vT+2}")
    g.c("head = (wg&7)*4 + (wg>>6), qblock = (wg>>3)&7, qp = w&3, kh = w>>2")
    g(f"s_and_b32 s{sHEAD}, s2, 7")
    g(f"s_lshr_b32 s{sT0}, s2, 6")
    g(f"s_lshl_b32 s{sHEAD}, s{sHEAD}, 2")
    g(f"s_add_u32 s{sHEAD}, s{sHEAD}, s{sT0}")
    g(f"s_lshl_b32 s{sHEAD}, s{sHEAD}, 16")
    g(f"s_bfe_u32 s{sT0}, s2, 0x30003")
    g(f"s_lshl_b32 s{sT0}, s{sT0}, 13")
    g(f"s_add_u32 s{sQ0OFF}, s{sT0}, s{sHEAD}")
    g(f"s_and_b32 s{sQP}, s{sW}, 3")
    g(f"s_lshr_b32 s{sKH}, s{sW}, 2")
    g(f"s_lshl_b32 s{sT0}, s{sQP}, 11")
    g(f"s_add_u32 s{sQ0OFF}, s{sQ0OFF}, s{sT0}")
    g(f"s_lshl_b32 s{sT0}, s{sKH}, 10")
    g(f"s_add_u32 s{sQOWN}, s{sQ0OFF}, s{sT0}")
    g(f"v_add_u32 v{vT+4}, s{sQOWN}, v{vF}")
    g(f"s_lshl_b32 s{sT0}, s{sKH}, 15")
    g(f"s_add_u32 s{sT0}, s{sT0}, s{sHEAD}")
    g(f"v_add_u32 v{vT+5}, s{sT0}, v{vF}")
    g(f"s_mov_b32 s{SRDD+2}, {0x8000 if o.rot else L_V + 65536}")
    g(f"s_mov_b32 s{SRDD+3}, 0x20000")
    g(f"s_lshl_b32 s{sT0}, s{sKH}, 15")
    g(f"s_lshr_b32 s{sT1}, s{sQP}, 1")
    g(f"s_lshl_b32 s{sT1}, s{sT1}, 10")
    g(f"s_add_u32 s{sT0}, s{sT0}, s{sT1}")
    g(f"s_and_b32 s{sREG}, s{sW}, 1")
    g(f"s_lshl_b32 s{sREG}, s{sREG}, 16")
    g(f"s_add_u32 s{sREG}, s{sREG}, {L_K}")
    g(f"s_add_u32 m0, s{sT0}, s{sREG}")
    if o.rot:
        g(f"s_lshr_b32 s{sROT}, s{sHEAD}, 5")
        g(f"s_and_b32 s{sROT}, s{sROT}, 0x7800")
        g(f"s_add_u32 s{sROT}, s{sROT}, s{sT1}")
        g(f"s_lshl_b32 s{sREG}, s{sKH}, 15")
        g(f"s_add_u32 s{sREG}, s{sREG}, s{sHEAD}")
    g(f"s_bitcmp1_b32 s{sW}, 0")
    g(f"s_cselect_b64 s[{sM}:{sM+1}], -1, 0")
    g(f"v_cndmask_b32 v{vD}, v{vF}, v{vL16}, s[{sM}:{sM+1}]")
    g("s_waitcnt lgkmcnt(0)")
    g.stamp()
    g(f"global_load_dwordx4 {r(Q0,4)}, v{vT+4}, s[{sQ}:{sQ+1}]")
    g(f"global_load_dwordx4 {r(KF[0],4)}, v{vT+5}, s[{sK}:{sK+1}]")
    g(f"s_cselect_b64 s[{SRDD}:{SRDD+1}], s[{sV}:{sV+1}], s[{sK}:{sK+1}]")
    if o.rot:
        g(f"s_add_u32 s{SRDD}, s{SRDD}, s{sREG}")
        g(f"s_addc_u32 s{SRDD+1}, s{SRDD+1}, 0")
        g(DMA_B2)
    else:
        g(f"s_add_u32 s{SRDD}, s{SRDD}, s{sHEAD}")
        g(f"s_addc_u32 s{SRDD+1}, s{SRDD+1}, 0")
        g(f"s_sub_u32 s{SRDD}, s{SRDD}, s{sREG}")
        g(f"s_subb_u32 s{SRDD+1}, s{SRDD+1}, 0")
        g(DMA_B)
    g.stamp()
    g(f"s_mov_b32 s{SRDO}, s{sO}")
    g(f"s_mov_b32 s{SRDO+1}, s{sO+1}")
    g(f"s_mov_b32 s{SRDO+2}, 0x200000")
    g(f"s_mov_b32 s{SRDO+3}, 0x20000")
    g(f"s_add_u32 s{sQ1OFF}, s{sQ0OFF}, 1024")
    g.c("constant rows for the row sum (A rows 16 and 20 = 1.0, other padding rows 0)")
    g(f"v_and_b32 v{vT+4}, 1, v0")
    g(f"v_subrev_u32 v{vT+4}, 1, v{vT+4}")
    g(f"v_and_b32 v{vT+4}, 0x3f80, v{vT+4}")
    g(f"v_mov_b32 v{vT+5}, 0")
    g(f"v_mov_b32 v{vT+6}, v{vT+4}")
    g(f"v_mov_b32 v{vT+7}, 0")
    g(f"s_lshl_b32 s{sT0}, s{sW}, 10")
    g(f"v_add_u32 v{vT}, s{sT0}, v{vL16}")
    g(f"ds_write_b128 v{vT}, {r(vT+4,4)} offset:{L_ONES}")
    g(f"v_add_u32 v{vZ}, {L_X}, v{vT}")
    g(f"v_xor_b32 v{vQX}, 0x1000, v{vT}")
    g(f"v_add_u32 v{vQX}, {L_X}, v{vQX}")
    g(f"s_lshl_b32 s{sT0}, s{sKH}, 15")
    g(f"s_add_u32 s{sT1}, s{sT0}, {L_K}")
    g(f"v_add_u32 v{vAK}, s{sT1}, v{vL16}")
    g(f"v_and_b32 v{vT}, 15, v0")
    g(f"v_lshlrev_b32 v{vT}, 3, v{vT}")
    g(f"v_bfe_u32 v{vT+1}, v0, 5, 1")
    g(f"v_lshlrev_b32 v{vT+1}, 8, v{vT+1}")
    g(f"s_add_u32 s{sT1}, s{sT0}, {L_V}")
    g(f"v_add_u32 v{vT+1}, s{sT1}, v{vT+1}")
    g(f"v_mov_b32 v{vT+2}, {L_ONES + 128}")
    g(f"v_and_b32 v{vT+3}, 16, v0")
    g(f"v_cmp_eq_u32 vcc, 0, v{vT+3}")
    g(f"v_mov_b32 v{vT+3}, {VPER*1024}")
    g(f"v_mov_b32 v{vIDX}, 0xdddddddd")
    g(f"v_cndmask_b32 v{vT+1}, v{vT+2}, v{vT+1}, vcc")
    g(f"v_cndmask_b32 v{vINC}, 0, v{vT+3}, vcc")
    g(f"v_add_u32 v{vAV}, v{vT}, v{vT+1}")
    npre = o.pre
    for i in range(npre):
        if o.rot:
            for x in DMA_A2: g(x)
            g(DMA_B2)
        else:
            g(DMA_A); g("s_nop 0"); g(DMA_B)
    g(f"s_mul_i32 s{sT0}, s{sQP}, {XSLOT}")
    g(f"s_add_u32 s{sT0}, s{sT0}, {L_X}")
    g(f"v_lshrrev_b32 v{vT}, 2, v{vL16}")
    g(f"v_add_u32 v{vXA}, s{sT0}, v{vL16}")
    g(f"v_add_u32 v{vXB}, s{sT0}, v{vT}")
    for i in range(9): g(f"v_mov_b32 v{ACC0+i}, 0")
    for i in range(9): g(f"v_mov_b32 v{ACC1+i}, 0")
    if o.zacc:
        for i in range(9, 16): g(f"v_mov_b32 v{ACC0+i}, 0")
        for i in range(9, 16): g(f"v_mov_b32 v{ACC1+i}, 0")
    g.stamp()
    g(f"s_waitcnt vmcnt({2 + npre})")
    g.stamp()
    scale_q(g, Q0)
    g(f"ds_write_b128 v{vZ}, {r(Q0,4)}")
    g(f"s_waitcnt vmcnt({1 + npre})")
    qk(g, S0, KF[0], Q0)
    g("s_nop 11")
    exps(g, S0, 0, 16)
    g(f"s_waitcnt vmcnt({npre}) lgkmcnt(0)")
    g.stamp()
    g("s_barrier")
    g.stamp()
    if o.stamps: g("s_memrealtime s[94:95]")
    g(f"ds_read_b128 {r(Q1,4)}, v{vQX}")
    trd(g, VA[0], 0)
    trd(g, VA[0] + 2, 128)
    trd(g, VB[0], 512)
    trd(g, VB[0] + 2, 640)
    krd(g, KF[1], 1024)
    issued = 1 + npre
    covered = 1
    bars = dict(o.bars)
    flips = set(o.flips)
    warm_done = False
    for kt in range(32):
        extra = {}
        if kt in bars:
            need = bars[kt]
            assert need <= issued
            g(f"s_waitcnt vmcnt({issued - need + (1 if warm_done else 0)})")
            g("s_barrier")
            covered = need
            if o.stampbars: g.stamp()
            if kt == 1:
                krd(g, KF[0], 2048)
                extra.setdefault(3, []).append("s_waitcnt lgkmcnt(4)")
            if o.prio: prio_hi_f(g)
        if o.stampat and kt in o.stampat and kt not in bars: g.stamp()
        if kt >= 1: assert min(kt + 2, 31) < 2 * covered, (kt, covered)
        for a, b in ((0, 1), (2, 3), (4, 5))[:o.dper]:
            if issued < 16:
                extra.setdefault(a, []).extend(DMA_A2 if o.rot else [DMA_A])
                extra.setdefault(b, []).append(DMA_B2 if o.rot else DMA_B)
                issued += 1
            elif o.warm and not warm_done:
                extra.setdefault(b, []).append(f"buffer_load_dword v{vZ}, off, s[{SRDO}:{SRDO+3}], s{sQ0OFF}")
                warm_done = True
        if o.prio:
            if 2 * kt + 1 in flips: extra.setdefault(2, []).append("s_setprio 0")
            if 2 * kt + 2 in flips: extra.setdefault(5, []).append("s_setprio 0")
        if kt == 0: body0(g, extra)
        else: body(g, kt, extra, upto_m3=(kt == 31))
    assert issued == 16
    g(f"s_cmp_eq_u32 s{sKH}, 0")
    g("s_cbranch_scc1 L_give")
    g.c("finisher")
    g("s_barrier")
    g(f"ds_read_b128 {r(PA,4)}, v{vXA} offset:2304")
    g(f"ds_read_b128 {r(PA+4,4)}, v{vXA} offset:3328")
    g(f"ds_read_b32 v{PA+8}, v{vXB} offset:{2304+2048}")
    g(f"ds_read_b128 {r(PB,4)}, v{vXA}")
    g(f"ds_read_b128 {r(PB+4,4)}, v{vXA} offset:1024")
    g(f"ds_read_b32 v{PB+8}, v{vXB} offset:2048")
    exps(g, S1, 2, 12)
    smf(g, ACC1, VA[1], S1)
    exps(g, S1, 12, 16)
    g("s_waitcnt lgkmcnt(0)" + (" vmcnt(0)" if o.warm else ""))
    g("s_nop 0")
    smf(g, ACC1, VB[1], S1 + 8)
    i_end = g.stamp()
    if o.stamps: g("s_memrealtime s[96:97]")
    g.fs = 1
    fin(g, ACC0, PA, OA, sQ1OFF, vT)
    fin(g, ACC1, PB, OB, sQ0OFF, vT + 2)
    g.c("run-time safety check: 1 <= l <= 2^80 and all outputs finite, else exact true-max path")
    g(f"v_min_f32 v{vT+4}, v{ACC0+8}, v{ACC1+8}")
    g(f"v_max_f32 v{vT+5}, v{ACC0+8}, v{ACC1+8}")
    g(f"v_cmp_le_f32 vcc, 1.0, v{vT+4}")
    g(f"v_pk_add_f32 {r(ACC0,2)}, {r(ACC0,2)}, {r(ACC0+2,2)}")
    g(f"s_mov_b64 s[{sT0}:{sT0+1}], vcc")
    g(f"v_cmp_ge_f32 vcc, 0x67800000, v{vT+5}")
    g(f"v_pk_add_f32 {r(ACC0+4,2)}, {r(ACC0+4,2)}, {r(ACC0+6,2)}")
    g(f"v_pk_add_f32 {r(ACC1,2)}, {r(ACC1,2)}, {r(ACC1+2,2)}")
    g(f"s_and_b64 s[{sT0}:{sT0+1}], s[{sT0}:{sT0+1}], vcc")
    g(f"v_pk_add_f32 {r(ACC1+4,2)}, {r(ACC1+4,2)}, {r(ACC1+6,2)}")
    g(f"v_pk_add_f32 {r(ACC0,2)}, {r(ACC0,2)}, {r(ACC0+4,2)}")
    g(f"v_pk_add_f32 {r(ACC1,2)}, {r(ACC1,2)}, {r(ACC1+4,2)}")
    g(f"v_pk_add_f32 {r(ACC0,2)}, {r(ACC0,2)}, {r(ACC1,2)}")
    g(f"v_mov_b32 v{vT+4}, 0x1f8")
    g(f"v_add_f32 v{ACC0}, v{ACC0}, v{ACC0+1}")
    g(f"v_cmp_class_f32 vcc, v{ACC0}, v{vT+4}")
    g(f"s_and_b64 s[{sT0}:{sT0+1}], s[{sT0}:{sT0+1}], vcc")
    if o.force_slow:
        g(f"s_mov_b64 s[{sT0}:{sT0+1}], 0")
    g(f"s_cmp_eq_u64 s[{sT0}:{sT0+1}], exec")
    g("s_cbranch_scc0 L_slow")
    def stamp_out():
        if o.lite:
            g("s_waitcnt vmcnt(0)")
            g("s_memrealtime s[92:93]")
            g(f"s_lshl_b32 s{sT0}, s2, 3")
            g(f"s_add_u32 s{sT0}, s{sT0}, s{sW}")
            g(f"s_lshl_b32 s{sT0}, s{sT0}, 3")
            g(f"v_mov_b32 v{vT}, s{sT0}")
            g("s_waitcnt lgkmcnt(0)")
            g(f"v_mov_b32 v{vT+2}, s90")
            g(f"v_mov_b32 v{vT+3}, s92")
            g(f"global_store_dwordx2 v{vT}, v[{vT+2}:{vT+3}], s[42:43]")
        if not o.stamps: return
        g.stamp(i_end + 1)
        g("s_memrealtime s[92:93]")
        g("s_waitcnt lgkmcnt(0)")
        g(f"s_lshl_b32 s{sT0}, s2, 3")
        g(f"s_add_u32 s{sT0}, s{sT0}, s{sW}")
        g(f"s_lshl_b32 s{sT0}, s{sT0}, 8")
        g(f"v_mov_b32 v{vT}, s{sT0}")
        regs = [sTS + 2 * i for i in range(i_end + 2)] + [90, 92, 94, 96]
        for i, sr in enumerate(regs):
            g(f"v_mov_b32 v{vT+2}, s{sr}")
            g(f"v_mov_b32 v{vT+3}, s{sr+1}")
            g(f"global_store_dwordx2 v{vT}, v[{vT+2}:{vT+3}], s[42:43] offset:{8*i}")
            g("s_nop 1")
    stamp_out()
    g.label("L_end")
    g("s_endpgm")
    g.label("L_give")
    g.c("giver: hand both partial accumulators to the partner wave")
    exps(g, S1, 2, 12)
    smf(g, ACC1, VA[1], S1)
    g(f"ds_write_b128 v{vXA}, {r(ACC0,4)}")
    g(f"ds_write_b128 v{vXA}, {r(ACC0+4,4)} offset:1024")
    g(f"ds_write_b32 v{vXB}, v{ACC0+8} offset:2048")
    exps(g, S1, 12, 16)
    g("s_nop 1")
    smf(g, ACC1, VB[1], S1 + 8)
    if o.stamps:
        g.stamp(i_end)
        g("s_memrealtime s[96:97]")
    g("s_nop 11")
    g(f"ds_write_b128 v{vXA}, {r(ACC1,4)} offset:2304")
    g(f"ds_write_b128 v{vXA}, {r(ACC1+4,4)} offset:3328")
    g(f"ds_write_b32 v{vXB}, v{ACC1+8} offset:{2304+2048}")
    g("s_waitcnt lgkmcnt(0)")
    g("s_barrier")
    stamp_out()
    g("s_endpgm")
    if o.stamps: sys.stderr.write(f"nstamps={i_end+2}\n")
    g.label("L_slow")
    g("s_waitcnt vmcnt(0)")
    g(f"s_mov_b32 s{sIT}, 0")
    g(f"s_mov_b32 s{sOFF}, s{sQ1OFF}")
    g(f"v_cmp_ne_u32 vcc, 0, v{vINC}")
    g(f"v_mov_b32 v{vT+3}, 0x400")
    g("s_nop 0")
    g(f"v_cndmask_b32 v{vINC}, 0, v{vT+3}, vcc")
    g.label("L_s0")
    g.c("pass 1: true row max over all 2048 keys")
    g(f"v_add_u32 v{vAK}, {L_K}, v{vL16}")
    g(f"v_mov_b32 v{vT}, 0xff800000")
    g(f"s_mov_b32 s{sCNT}, 64")
    g.label("L_s1")
    krd(g, KF[0], 0)
    g("s_waitcnt lgkmcnt(0)")
    qk(g, S0, KF[0], Q0)
    g(f"v_add_u32 v{vAK}, 0x400, v{vAK}")
    g("s_nop 15")
    for i in range(8):
        g(f"v_max3_f32 v{vT}, v{vT}, v{S0+2*i}, v{S0+2*i+1}")
    g(f"s_sub_u32 s{sCNT}, s{sCNT}, 1")
    g(f"s_cmp_lg_u32 s{sCNT}, 0")
    g("s_cbranch_scc1 L_s1")
    g(f"v_mov_b32 v{vT+1}, v{vT}")
    g("s_nop 1")
    g(f"v_permlane32_swap_b32 v{vT}, v{vT+1}")
    g("s_nop 1")
    g(f"v_max_f32 v{vT}, v{vT}, v{vT+1}")
    for i in range(16): g(f"v_sub_f32 v{CB+i}, 0, v{vT}")
    for i in range(16): g(f"v_mov_b32 v{ACC1+i}, 0")
    g.c("pass 2: exp(s - max), PV and row sum")
    g(f"v_add_u32 v{vAK}, {L_K}, v{vL16}")
    g(f"v_and_b32 v{vT}, 15, v0")
    g(f"v_lshlrev_b32 v{vT}, 3, v{vT}")
    g(f"v_bfe_u32 v{vT+1}, v0, 5, 1")
    g(f"v_lshlrev_b32 v{vT+1}, 8, v{vT+1}")
    g(f"v_add_u32 v{vT+1}, {L_V}, v{vT+1}")
    g(f"v_mov_b32 v{vT+2}, {L_ONES + 128}")
    g(f"v_cmp_ne_u32 vcc, 0, v{vINC}")
    g("s_nop 1")
    g(f"v_cndmask_b32 v{vT+1}, v{vT+2}, v{vT+1}, vcc")
    g(f"v_add_u32 v{vAV}, v{vT}, v{vT+1}")
    g(f"s_mov_b32 s{sCNT}, 64")
    g.label("L_s2")
    krd(g, KF[0], 0)
    trd(g, VA[0], 0)
    trd(g, VA[0] + 2, 128)
    trd(g, VB[0], 512)
    trd(g, VB[0] + 2, 640)
    g("s_waitcnt lgkmcnt(0)")
    qk(g, S0, KF[0], Q0, r(CB, 16))
    g(f"v_add_u32 v{vAK}, 0x400, v{vAK}")
    g(f"v_add_u32 v{vAV}, v{vINC}, v{vAV}")
    g("s_nop 15")
    exps(g, S0, 0, 16)
    g("s_nop 1")
    smf(g, ACC1, VA[0], S0)
    smf(g, ACC1, VB[0], S0 + 8)
    g(f"s_sub_u32 s{sCNT}, s{sCNT}, 1")
    g(f"s_cmp_lg_u32 s{sCNT}, 0")
    g("s_cbranch_scc1 L_s2")
    g("s_nop 15")
    fin(g, ACC1, None, OA, sOFF, vT)
    g(f"s_cmp_lg_u32 s{sIT}, 0")
    g("s_cbranch_scc1 L_end2")
    g(f"s_mov_b32 s{sIT}, 1")
    g(f"s_mov_b32 s{sOFF}, s{sQ0OFF}")
    for i in range(4): g(f"v_mov_b32 v{Q0+i}, v{Q1+i}")
    g("s_branch L_s0")
    g.label("L_end2")
    g("s_endpgm")
    g.L.append('.section .rodata,"a"')
    g.L.append(".p2align 6")
    g.L.append(f".amdhsa_kernel {NAME}_kernel")
    g.L.append(f"  .amdhsa_next_free_vgpr {NVGPR}")
    g.L.append(f"  .amdhsa_next_free_sgpr 100")
    g.L.append(f"  .amdhsa_accum_offset {(NVGPR+3)//4*4}")
    g.L.append("  .amdhsa_group_segment_fixed_size 0")
    g.L.append("  .amdhsa_kernarg_size 48")
    g.L.append("  .amdhsa_user_sgpr_count 2")
    g.L.append("  .amdhsa_user_sgpr_kernarg_segment_ptr 1")
    g.L.append("  .amdhsa_system_sgpr_workgroup_id_x 1")
    g.L.append(".end_amdhsa_kernel")
    return "\n".join(g.L) + "\n"

def parse(argv=None):
    ap = argparse.ArgumentParser()
    ap.add_argument("-o", default=f"cdna_kernels/{NAME}.s")
    ap.add_argument("--stamps", action="store_true")
    ap.add_argument("--stampbars", action="store_true")
    ap.add_argument("--force-slow", action="store_true")
    ap.add_argument("--pre", type=int, default=3)
    ap.add_argument("--dper", type=int, default=3)
    ap.add_argument("--prio", type=int, default=1)
    ap.add_argument("--warm", type=int, default=0)
    ap.add_argument("--zacc", type=int, default=1)
    ap.add_argument("--bars", default="1:4,6:8,14:16")
    ap.add_argument("--flips", default="11,26,56")
    ap.add_argument("--stampat", default="")
    ap.add_argument("--stampfin", action="store_true")
    ap.add_argument("--lite", action="store_true")
    ap.add_argument("--rot", type=int, default=0)
    ap.add_argument("--stflags", default=" nt")
    a = ap.parse_args(argv)
    a.bars = [tuple(map(int, x.split(":"))) for x in a.bars.split(",")]
    a.flips = [int(x) for x in a.flips.split(",")]
    a.stampat = [int(x) for x in a.stampat.split(",")] if a.stampat else []
    return a
if __name__ == "__main__":
    a = parse()
    open(a.o, "w").write(build(a))
```

```python
import sys, argparse
from gen import HEADER, NAME

L_ONES = 0
L_K = 8192
L_V = L_K + 65536
L_X = L_V + 65536
XSLOT = 4608
LDS_BYTES = L_X + 4 * XSLOT

vF = 1; vL16 = 2; vAK = 3; vAV = 4; vINC = 5; vIDX = 6
vXA = 7; vXB = 8; vQX = 9; vD = 10; vZ = 11
vT = 12
Q0 = 20; Q1 = 24
KF = [28, 32]; VA = [36, 40]; VB = [44, 48]
S0 = 52; S1 = 68; ACC0 = 84; ACC1 = 100
PA = 116; PB = 128
CB = 116
OA = 140; OB = 144
NVGPR = 148
sQ, sK, sV, sO = 4, 6, 8, 10
SRDD, SRDQ, SRDO = 12, 16, 20
sW, sHEAD, sQP, sKH, sREG = 24, 25, 26, 27, 28
sQ0OFF, sQ1OFF, sQOWN = 29, 30, 31
sM = 32
sT0, sT1 = 34, 35
sCNT, sIT, sOFF = 36, 37, 38
sTS = 44

def r(base, n): return f"v[{base}:{base+n-1}]"

class Gen:
    def __init__(self, o):
        self.L = []; self.o = o; self.nst = 0; self.nl = 0
    def __call__(self, s): self.L.append("    " + s)
    def label(self, s): self.L.append(s + ":")
    def c(self, s): self.L.append("    ; " + s)
    def stamp(self, idx=None):
        if self.o.stamps:
            if idx is None:
                idx = self.nst; self.nst += 1
            i = sTS + 2 * idx
            self(f"s_memtime s[{i}:{i+1}]")
            return idx
    def newlabel(self):
        self.nl += 1
        return f"L_t{self.nl}"

def exps(g, S, lo, hi):
    for i in range(lo, hi): g(f"v_exp_f32 v{S+i}, v{S+i}")
def smf(g, acc, A, B): g(f"v_smfmac_f32_32x32x32_bf16 {r(acc,16)}, {r(A,4)}, {r(B,8)}, v{vIDX}")
def qk(g, S, K, Q, C="0"): g(f"v_mfma_f32_32x32x16_bf16 {r(S,16)}, {r(K,4)}, {r(Q,4)}, {C}")
def trd(g, dst, off): g(f"ds_read_b64_tr_b16 {r(dst,2)}, v{vAV} offset:{off}")
def krd(g, dst, off): g(f"ds_read_b128 {r(dst,4)}, v{vAK} offset:{off}")
DMA_A = "s_addk_i32 m0, 0x800"
DMA_B = f"buffer_load_dwordx4 v{vD}, s[{SRDD}:{SRDD+3}], m0 offen lds"
sROT = 39
DMA_A2 = ["s_addk_i32 m0, 0x800", f"s_addk_i32 s{sROT}, 0x800", f"s_and_b32 s{sROT}, s{sROT}, 0x7fff"]
DMA_B2 = f"buffer_load_dwordx4 v{vD}, s[{SRDD}:{SRDD+3}], s{sROT} offen lds"

VPER = 4
def body(g, kt, extra, skipk=False, upto_m3=False):
    f = kt & 1
    last = kt == 31
    vo = ((kt % VPER) + 1) * 1024
    ko = (kt + 2) * 1024
    def X(m):
        for s in extra.get(m, []): g(s)
    if kt > 0:
        exps(g, S1, 12, 16)
        exps(g, S0, 0, 2)
        smf(g, ACC1, VB[f ^ 1], S1 + 8)
    if not last: trd(g, VA[f ^ 1], vo)
    X(0)
    exps(g, S0, 2, 7)
    qk(g, S1, KF[f], Q1)
    if not last: trd(g, VA[f ^ 1] + 2, vo + 128)
    else: g("s_nop 0")
    X(1)
    exps(g, S0, 7, 12)
    smf(g, ACC0, VA[f], S0)
    if kt < 30 and not skipk: krd(g, KF[f], ko)
    else: g("s_nop 0")
    X(2)
    exps(g, S0, 12, 16)
    exps(g, S1, 0, 2)
    smf(g, ACC0, VB[f], S0 + 8)
    if upto_m3: return
    trd(g, VB[f ^ 1], vo + 512)
    X(3)
    exps(g, S1, 2, 7)
    qk(g, S0, KF[f ^ 1], Q0)
    trd(g, VB[f ^ 1] + 2, vo + 640)
    X(4)
    exps(g, S1, 7, 12)
    smf(g, ACC1, VA[f], S1)
    g("s_waitcnt lgkmcnt(0)")
    X(5)
    if kt % VPER == VPER - 1:
        g(f"v_add_u32 v{vAV}, v{vINC}, v{vAV}")

def body0(g, extra):
    st = g.o.stamps
    def X(m):
        for s in extra.get(m, []): g(s)
    X(0)
    g("s_waitcnt lgkmcnt(5)" if not st else "s_waitcnt lgkmcnt(0)")
    qk(g, S1, KF[0], Q1)
    X(1)
    g("s_waitcnt lgkmcnt(3)" if not st else "s_nop 0")
    smf(g, ACC0, VA[0], S0)
    X(2)
    g("s_waitcnt lgkmcnt(0)")
    smf(g, ACC0, VB[0], S0 + 8)
    trd(g, VA[1], 1024)
    trd(g, VA[1] + 2, 1024 + 128)
    X(3)
    g("s_nop 5")
    exps(g, S1, 0, 7)
    qk(g, S0, KF[1], Q0)
    trd(g, VB[1], 1024 + 512)
    trd(g, VB[1] + 2, 1024 + 640)
    X(4)
    exps(g, S1, 7, 12)
    smf(g, ACC1, VA[0], S1)
    g("s_waitcnt lgkmcnt(0)")
    X(5)

def scale_q(g, Q):
    for i in range(4):
        a, b = vT + 2 * i, vT + 2 * i + 1
        g(f"v_lshlrev_b32 v{a}, 16, v{Q+i}")
        g(f"v_and_b32 v{b}, 0xffff0000, v{Q+i}")
    for i in range(8):
        g(f"v_mul_f32 v{vT+i}, 0x3eb8aa3b, v{vT+i}")
    for i in range(4):
        g(f"v_cvt_pk_bf16_f32 v{Q+i}, v{vT+2*i}, v{vT+2*i+1}")

def prio_hi_f(g):
    l = g.newlabel()
    g(f"s_cmp_eq_u32 s{sKH}, 0")
    g(f"s_cbranch_scc1 {l}")
    g("s_setprio 1")
    g.label(l)

def fin(g, acc, P, O, soff, rc):
    if P is not None:
        g(f"v_add_f32 v{acc+8}, v{acc+8}, v{P+8}")
        g(f"v_pk_add_f32 {r(acc,2)}, {r(acc,2)}, {r(P,2)}")
        g(f"v_rcp_f32 v{rc}, v{acc+8}")
        for i in range(1, 4): g(f"v_pk_add_f32 {r(acc+2*i,2)}, {r(acc+2*i,2)}, {r(P+2*i,2)}")
    else:
        g(f"v_rcp_f32 v{rc}, v{acc+8}")
        g("s_nop 0")
    for i in range(4): g(f"v_pk_mul_f32 {r(acc+2*i,2)}, {r(acc+2*i,2)}, {r(rc,2)} op_sel_hi:[1,0]")
    for i in (0, 2, 1, 3): g(f"v_cvt_pk_bf16_f32 v{O+i}, v{acc+2*i}, v{acc+2*i+1}")
    g("s_nop 0")
    g(f"v_permlane32_swap_b32 v{O}, v{O+2}")
    g(f"v_permlane32_swap_b32 v{O+1}, v{O+3}")
    if g.o.stampfin and P is not None: g.stamp(g.fs); g.fs += 1
    g(f"buffer_store_dwordx4 {r(O,4)}, v{vF}, s[{SRDO}:{SRDO+3}], s{soff} offen{g.o.stflags}")
    if g.o.stampfin and P is not None: g.stamp(g.fs); g.fs += 1

def build(o):
    g = Gen(o)
    g.L.append(HEADER.rstrip("\n"))
    g.L.append(f"; @launch grid=(256,1,1) block=(512,1,1) lds={LDS_BYTES}")
    g.L.append('.amdgcn_target "amdgcn-amd-amdhsa--gfx950"')
    g.L.append(".text")
    g.L.append(f".globl {NAME}_kernel")
    g.L.append(".p2align 8")
    g.L.append(f".type {NAME}_kernel,@function")
    g.label(f"{NAME}_kernel")
    g("s_cmp_ge_u32 s2, 256")
    g("s_cbranch_scc1 L_end")
    g("s_load_dwordx8 s[4:11], s[0:1], 0")
    if o.stamps or o.lite:
        g(f"s_load_dwordx2 s[42:43], s[0:1], 40")
    if o.stamps or o.lite or o.pad:
        g("s_memrealtime s[90:91]")
    g.stamp()
    g(f"v_lshrrev_b32 v{vT}, 6, v0")
    g(f"v_and_b32 v{vT+1}, 31, v0")
    g(f"v_readfirstlane_b32 s{sW}, v{vT}")
    g(f"v_and_b32 v{vT+2}, 63, v0")
    g(f"v_lshlrev_b32 v{vT+1}, 5, v{vT+1}")
    g(f"v_bfe_u32 v{vT+3}, v0, 5, 1")
    g(f"v_lshl_add_u32 v{vF}, v{vT+3}, 4, v{vT+1}")
    g(f"v_lshlrev_b32 v{vL16}, 4, v{vT+2}")
    g.c("head = (wg&7)*4 + (wg>>6), qblock = (wg>>3)&7, qp = w&3, kh = w>>2")
    g(f"s_and_b32 s{sHEAD}, s2, 7")
    g(f"s_lshr_b32 s{sT0}, s2, 6")
    g(f"s_lshl_b32 s{sHEAD}, s{sHEAD}, 2")
    g(f"s_add_u32 s{sHEAD}, s{sHEAD}, s{sT0}")
    g(f"s_lshl_b32 s{sHEAD}, s{sHEAD}, 16")
    g(f"s_bfe_u32 s{sT0}, s2, 0x30003")
    g(f"s_lshl_b32 s{sT0}, s{sT0}, 13")
    g(f"s_add_u32 s{sQ0OFF}, s{sT0}, s{sHEAD}")
    g(f"s_and_b32 s{sQP}, s{sW}, 3")
    g(f"s_lshr_b32 s{sKH}, s{sW}, 2")
    g(f"s_lshl_b32 s{sT0}, s{sQP}, 11")
    g(f"s_add_u32 s{sQ0OFF}, s{sQ0OFF}, s{sT0}")
    g(f"s_lshl_b32 s{sT0}, s{sKH}, 10")
    g(f"s_add_u32 s{sQOWN}, s{sQ0OFF}, s{sT0}")
    g(f"v_add_u32 v{vT+4}, s{sQOWN}, v{vF}")
    g(f"s_lshl_b32 s{sT0}, s{sKH}, 15")
    g(f"s_add_u32 s{sT0}, s{sT0}, s{sHEAD}")
    g(f"v_add_u32 v{vT+5}, s{sT0}, v{vF}")
    g(f"s_mov_b32 s{SRDD+2}, {0x8000 if o.rot else L_V + 65536}")
    g(f"s_mov_b32 s{SRDD+3}, 0x20000")
    g(f"s_lshl_b32 s{sT0}, s{sKH}, 15")
    g(f"s_lshr_b32 s{sT1}, s{sQP}, 1")
    g(f"s_lshl_b32 s{sT1}, s{sT1}, 10")
    g(f"s_add_u32 s{sT0}, s{sT0}, s{sT1}")
    g(f"s_and_b32 s{sREG}, s{sW}, 1")
    g(f"s_lshl_b32 s{sREG}, s{sREG}, 16")
    g(f"s_add_u32 s{sREG}, s{sREG}, {L_K}")
    g(f"s_add_u32 m0, s{sT0}, s{sREG}")
    if o.rot:
        g(f"s_lshr_b32 s{sROT}, s{sHEAD}, 5")
        g(f"s_and_b32 s{sROT}, s{sROT}, 0x7800")
        g(f"s_add_u32 s{sROT}, s{sROT}, s{sT1}")
        g(f"s_lshl_b32 s{sREG}, s{sKH}, 15")
        g(f"s_add_u32 s{sREG}, s{sREG}, s{sHEAD}")
    g(f"s_bitcmp1_b32 s{sW}, 0")
    g(f"s_cselect_b64 s[{sM}:{sM+1}], -1, 0")
    g(f"v_cndmask_b32 v{vD}, v{vF}, v{vL16}, s[{sM}:{sM+1}]")
    g("s_waitcnt lgkmcnt(0)")
    g.stamp()
    g(f"global_load_dwordx4 {r(Q0,4)}, v{vT+4}, s[{sQ}:{sQ+1}]")
    g(f"global_load_dwordx4 {r(KF[0],4)}, v{vT+5}, s[{sK}:{sK+1}]")
    g(f"s_cselect_b64 s[{SRDD}:{SRDD+1}], s[{sV}:{sV+1}], s[{sK}:{sK+1}]")
    if o.rot:
        g(f"s_add_u32 s{SRDD}, s{SRDD}, s{sREG}")
        g(f"s_addc_u32 s{SRDD+1}, s{SRDD+1}, 0")
        g(DMA_B2)
    else:
        g(f"s_add_u32 s{SRDD}, s{SRDD}, s{sHEAD}")
        g(f"s_addc_u32 s{SRDD+1}, s{SRDD+1}, 0")
        g(f"s_sub_u32 s{SRDD}, s{SRDD}, s{sREG}")
        g(f"s_subb_u32 s{SRDD+1}, s{SRDD+1}, 0")
        g(DMA_B)
    g.stamp()
    g(f"s_mov_b32 s{SRDO}, s{sO}")
    g(f"s_mov_b32 s{SRDO+1}, s{sO+1}")
    g(f"s_mov_b32 s{SRDO+2}, 0x200000")
    g(f"s_mov_b32 s{SRDO+3}, 0x20000")
    g(f"s_add_u32 s{sQ1OFF}, s{sQ0OFF}, 1024")
    g.c("constant rows for the row sum (A rows 16 and 20 = 1.0, other padding rows 0)")
    g(f"v_and_b32 v{vT+4}, 1, v0")
    g(f"v_subrev_u32 v{vT+4}, 1, v{vT+4}")
    g(f"v_and_b32 v{vT+4}, 0x3f80, v{vT+4}")
    g(f"v_mov_b32 v{vT+5}, 0")
    g(f"v_mov_b32 v{vT+6}, v{vT+4}")
    g(f"v_mov_b32 v{vT+7}, 0")
    g(f"s_lshl_b32 s{sT0}, s{sW}, 10")
    g(f"v_add_u32 v{vT}, s{sT0}, v{vL16}")
    g(f"ds_write_b128 v{vT}, {r(vT+4,4)} offset:{L_ONES}")
    g(f"v_add_u32 v{vZ}, {L_X}, v{vT}")
    g(f"v_xor_b32 v{vQX}, 0x1000, v{vT}")
    g(f"v_add_u32 v{vQX}, {L_X}, v{vQX}")
    g(f"s_lshl_b32 s{sT0}, s{sKH}, 15")
    g(f"s_add_u32 s{sT1}, s{sT0}, {L_K}")
    g(f"v_add_u32 v{vAK}, s{sT1}, v{vL16}")
    g(f"v_and_b32 v{vT}, 15, v0")
    g(f"v_lshlrev_b32 v{vT}, 3, v{vT}")
    g(f"v_bfe_u32 v{vT+1}, v0, 5, 1")
    g(f"v_lshlrev_b32 v{vT+1}, 8, v{vT+1}")
    g(f"s_add_u32 s{sT1}, s{sT0}, {L_V}")
    g(f"v_add_u32 v{vT+1}, s{sT1}, v{vT+1}")
    g(f"v_mov_b32 v{vT+2}, {L_ONES + 128}")
    g(f"v_and_b32 v{vT+3}, 16, v0")
    g(f"v_cmp_eq_u32 vcc, 0, v{vT+3}")
    g(f"v_mov_b32 v{vT+3}, {VPER*1024}")
    g(f"v_mov_b32 v{vIDX}, 0xdddddddd")
    g(f"v_cndmask_b32 v{vT+1}, v{vT+2}, v{vT+1}, vcc")
    g(f"v_cndmask_b32 v{vINC}, 0, v{vT+3}, vcc")
    g(f"v_add_u32 v{vAV}, v{vT}, v{vT+1}")
    npre = o.pre
    for i in range(npre):
        if o.rot:
            for x in DMA_A2: g(x)
            g(DMA_B2)
        else:
            g(DMA_A); g("s_nop 0"); g(DMA_B)
    g(f"s_mul_i32 s{sT0}, s{sQP}, {XSLOT}")
    g(f"s_add_u32 s{sT0}, s{sT0}, {L_X}")
    g(f"v_lshrrev_b32 v{vT}, 2, v{vL16}")
    g(f"v_add_u32 v{vXA}, s{sT0}, v{vL16}")
    g(f"v_add_u32 v{vXB}, s{sT0}, v{vT}")
    for i in range(9): g(f"v_mov_b32 v{ACC0+i}, 0")
    for i in range(9): g(f"v_mov_b32 v{ACC1+i}, 0")
    if o.zacc:
        for i in range(9, 16): g(f"v_mov_b32 v{ACC0+i}, 0")
        for i in range(9, 16): g(f"v_mov_b32 v{ACC1+i}, 0")
    g.stamp()
    g(f"s_waitcnt vmcnt({2 + npre})")
    g.stamp()
    scale_q(g, Q0)
    g(f"ds_write_b128 v{vZ}, {r(Q0,4)}")
    g(f"s_waitcnt vmcnt({1 + npre})")
    qk(g, S0, KF[0], Q0)
    g("s_nop 11")
    exps(g, S0, 0, 16)
    g(f"s_waitcnt vmcnt({npre}) lgkmcnt(0)")
    g.stamp()
    g("s_barrier")
    g.stamp()
    if o.stamps: g("s_memrealtime s[94:95]")
    g(f"ds_read_b128 {r(Q1,4)}, v{vQX}")
    trd(g, VA[0], 0)
    trd(g, VA[0] + 2, 128)
    trd(g, VB[0], 512)
    trd(g, VB[0] + 2, 640)
    krd(g, KF[1], 1024)
    issued = 1 + npre
    covered = 1
    bars = dict(o.bars)
    flips = set(o.flips)
    warm_done = False
    for kt in range(32):
        extra = {}
        if kt in bars:
            need = bars[kt]
            assert need <= issued
            g(f"s_waitcnt vmcnt({issued - need + (1 if warm_done else 0)})")
            g("s_barrier")
            covered = need
            if o.stampbars: g.stamp()
            if kt == 1:
                krd(g, KF[0], 2048)
                extra.setdefault(3, []).append("s_waitcnt lgkmcnt(4)")
            if o.prio: prio_hi_f(g)
        if o.stampat and kt in o.stampat and kt not in bars: g.stamp()
        if kt >= 1: assert min(kt + 2, 31) < 2 * covered, (kt, covered)
        for a, b in ((0, 1), (2, 3), (4, 5))[:o.dper]:
            if issued < 16:
                extra.setdefault(a, []).extend(DMA_A2 if o.rot else [DMA_A])
                extra.setdefault(b, []).append(DMA_B2 if o.rot else DMA_B)
                issued += 1
            elif o.warm and not warm_done:
                extra.setdefault(b, []).append(f"buffer_load_dword v{vZ}, off, s[{SRDO}:{SRDO+3}], s{sQ0OFF}")
                warm_done = True
        if o.prio:
            if 2 * kt + 1 in flips: extra.setdefault(2, []).append("s_setprio 0")
            if 2 * kt + 2 in flips: extra.setdefault(5, []).append("s_setprio 0")
        if kt == 0: body0(g, extra)
        else: body(g, kt, extra, upto_m3=(kt == 31))
    assert issued == 16
    g(f"s_cmp_eq_u32 s{sKH}, 0")
    g("s_cbranch_scc1 L_give")
    g.c("finisher")
    g("s_barrier")
    g(f"ds_read_b128 {r(PA,4)}, v{vXA} offset:2304")
    g(f"ds_read_b128 {r(PA+4,4)}, v{vXA} offset:3328")
    g(f"ds_read_b32 v{PA+8}, v{vXB} offset:{2304+2048}")
    g(f"ds_read_b128 {r(PB,4)}, v{vXA}")
    g(f"ds_read_b128 {r(PB+4,4)}, v{vXA} offset:1024")
    g(f"ds_read_b32 v{PB+8}, v{vXB} offset:2048")
    exps(g, S1, 2, 12)
    smf(g, ACC1, VA[1], S1)
    exps(g, S1, 12, 16)
    g("s_waitcnt lgkmcnt(0)" + (" vmcnt(0)" if o.warm else ""))
    g("s_nop 0")
    smf(g, ACC1, VB[1], S1 + 8)
    i_end = g.stamp()
    if o.stamps: g("s_memrealtime s[96:97]")
    g.fs = 1
    fin(g, ACC0, PA, OA, sQ1OFF, vT)
    fin(g, ACC1, PB, OB, sQ0OFF, vT + 2)
    g.c("run-time safety check: 1 <= l <= 2^80 and all outputs finite, else exact true-max path")
    g(f"v_min_f32 v{vT+4}, v{ACC0+8}, v{ACC1+8}")
    g(f"v_max_f32 v{vT+5}, v{ACC0+8}, v{ACC1+8}")
    g(f"v_cmp_le_f32 vcc, 1.0, v{vT+4}")
    g(f"v_pk_add_f32 {r(ACC0,2)}, {r(ACC0,2)}, {r(ACC0+2,2)}")
    g(f"s_mov_b64 s[{sT0}:{sT0+1}], vcc")
    g(f"v_cmp_ge_f32 vcc, 0x67800000, v{vT+5}")
    g(f"v_pk_add_f32 {r(ACC0+4,2)}, {r(ACC0+4,2)}, {r(ACC0+6,2)}")
    g(f"v_pk_add_f32 {r(ACC1,2)}, {r(ACC1,2)}, {r(ACC1+2,2)}")
    g(f"s_and_b64 s[{sT0}:{sT0+1}], s[{sT0}:{sT0+1}], vcc")
    g(f"v_pk_add_f32 {r(ACC1+4,2)}, {r(ACC1+4,2)}, {r(ACC1+6,2)}")
    g(f"v_pk_add_f32 {r(ACC0,2)}, {r(ACC0,2)}, {r(ACC0+4,2)}")
    g(f"v_pk_add_f32 {r(ACC1,2)}, {r(ACC1,2)}, {r(ACC1+4,2)}")
    g(f"v_pk_add_f32 {r(ACC0,2)}, {r(ACC0,2)}, {r(ACC1,2)}")
    g(f"v_mov_b32 v{vT+4}, 0x1f8")
    g(f"v_add_f32 v{ACC0}, v{ACC0}, v{ACC0+1}")
    g(f"v_cmp_class_f32 vcc, v{ACC0}, v{vT+4}")
    g(f"s_and_b64 s[{sT0}:{sT0+1}], s[{sT0}:{sT0+1}], vcc")
    if o.force_slow:
        g(f"s_mov_b64 s[{sT0}:{sT0+1}], 0")
    g(f"s_cmp_eq_u64 s[{sT0}:{sT0+1}], exec")
    g("s_cbranch_scc0 L_slow")
    def stamp_out():
        if o.lite:
            g("s_waitcnt vmcnt(0)")
            g("s_memrealtime s[92:93]")
            g(f"s_lshl_b32 s{sT0}, s2, 3")
            g(f"s_add_u32 s{sT0}, s{sT0}, s{sW}")
            g(f"s_lshl_b32 s{sT0}, s{sT0}, 3")
            g(f"v_mov_b32 v{vT}, s{sT0}")
            g("s_waitcnt lgkmcnt(0)")
            g(f"v_mov_b32 v{vT+2}, s90")
            g(f"v_mov_b32 v{vT+3}, s92")
            g(f"global_store_dwordx2 v{vT}, v[{vT+2}:{vT+3}], s[42:43]")
        if not o.stamps: return
        g.stamp(i_end + 1)
        g("s_memrealtime s[92:93]")
        g("s_waitcnt lgkmcnt(0)")
        g(f"s_lshl_b32 s{sT0}, s2, 3")
        g(f"s_add_u32 s{sT0}, s{sT0}, s{sW}")
        g(f"s_lshl_b32 s{sT0}, s{sT0}, 8")
        g(f"v_mov_b32 v{vT}, s{sT0}")
        regs = [sTS + 2 * i for i in range(i_end + 2)] + [90, 92, 94, 96]
        for i, sr in enumerate(regs):
            g(f"v_mov_b32 v{vT+2}, s{sr}")
            g(f"v_mov_b32 v{vT+3}, s{sr+1}")
            g(f"global_store_dwordx2 v{vT}, v[{vT+2}:{vT+3}], s[42:43] offset:{8*i}")
            g("s_nop 1")
    stamp_out()
    if o.pad:
        g.label("L_pad")
        g("s_memrealtime s[92:93]")
        g("s_waitcnt lgkmcnt(0)")
        g("s_sub_u32 s92, s92, s90")
        g(f"s_cmp_lt_u32 s92, {o.pad}")
        g("s_cbranch_scc1 L_pad")
    g.label("L_end")
    g("s_endpgm")
    g.label("L_give")
    g.c("giver: hand both partial accumulators to the partner wave")
    exps(g, S1, 2, 12)
    smf(g, ACC1, VA[1], S1)
    g(f"ds_write_b128 v{vXA}, {r(ACC0,4)}")
    g(f"ds_write_b128 v{vXA}, {r(ACC0+4,4)} offset:1024")
    g(f"ds_write_b32 v{vXB}, v{ACC0+8} offset:2048")
    exps(g, S1, 12, 16)
    g("s_nop 1")
    smf(g, ACC1, VB[1], S1 + 8)
    if o.stamps:
        g.stamp(i_end)
        g("s_memrealtime s[96:97]")
    g("s_nop 11")
    g(f"ds_write_b128 v{vXA}, {r(ACC1,4)} offset:2304")
    g(f"ds_write_b128 v{vXA}, {r(ACC1+4,4)} offset:3328")
    g(f"ds_write_b32 v{vXB}, v{ACC1+8} offset:{2304+2048}")
    g("s_waitcnt lgkmcnt(0)")
    g("s_barrier")
    stamp_out()
    g("s_endpgm")
    if o.stamps: sys.stderr.write(f"nstamps={i_end+2}\n")
    g.label("L_slow")
    g("s_waitcnt vmcnt(0)")
    g(f"s_mov_b32 s{sIT}, 0")
    g(f"s_mov_b32 s{sOFF}, s{sQ1OFF}")
    g(f"v_cmp_ne_u32 vcc, 0, v{vINC}")
    g(f"v_mov_b32 v{vT+3}, 0x400")
    g("s_nop 0")
    g(f"v_cndmask_b32 v{vINC}, 0, v{vT+3}, vcc")
    g.label("L_s0")
    g.c("pass 1: true row max over all 2048 keys")
    g(f"v_add_u32 v{vAK}, {L_K}, v{vL16}")
    g(f"v_mov_b32 v{vT}, 0xff800000")
    g(f"s_mov_b32 s{sCNT}, 64")
    g.label("L_s1")
    krd(g, KF[0], 0)
    g("s_waitcnt lgkmcnt(0)")
    qk(g, S0, KF[0], Q0)
    g(f"v_add_u32 v{vAK}, 0x400, v{vAK}")
    g("s_nop 15")
    for i in range(8):
        g(f"v_max3_f32 v{vT}, v{vT}, v{S0+2*i}, v{S0+2*i+1}")
    g(f"s_sub_u32 s{sCNT}, s{sCNT}, 1")
    g(f"s_cmp_lg_u32 s{sCNT}, 0")
    g("s_cbranch_scc1 L_s1")
    g(f"v_mov_b32 v{vT+1}, v{vT}")
    g("s_nop 1")
    g(f"v_permlane32_swap_b32 v{vT}, v{vT+1}")
    g("s_nop 1")
    g(f"v_max_f32 v{vT}, v{vT}, v{vT+1}")
    for i in range(16): g(f"v_sub_f32 v{CB+i}, 0, v{vT}")
    for i in range(16): g(f"v_mov_b32 v{ACC1+i}, 0")
    g.c("pass 2: exp(s - max), PV and row sum")
    g(f"v_add_u32 v{vAK}, {L_K}, v{vL16}")
    g(f"v_and_b32 v{vT}, 15, v0")
    g(f"v_lshlrev_b32 v{vT}, 3, v{vT}")
    g(f"v_bfe_u32 v{vT+1}, v0, 5, 1")
    g(f"v_lshlrev_b32 v{vT+1}, 8, v{vT+1}")
    g(f"v_add_u32 v{vT+1}, {L_V}, v{vT+1}")
    g(f"v_mov_b32 v{vT+2}, {L_ONES + 128}")
    g(f"v_cmp_ne_u32 vcc, 0, v{vINC}")
    g("s_nop 1")
    g(f"v_cndmask_b32 v{vT+1}, v{vT+2}, v{vT+1}, vcc")
    g(f"v_add_u32 v{vAV}, v{vT}, v{vT+1}")
    g(f"s_mov_b32 s{sCNT}, 64")
    g.label("L_s2")
    krd(g, KF[0], 0)
    trd(g, VA[0], 0)
    trd(g, VA[0] + 2, 128)
    trd(g, VB[0], 512)
    trd(g, VB[0] + 2, 640)
    g("s_waitcnt lgkmcnt(0)")
    qk(g, S0, KF[0], Q0, r(CB, 16))
    g(f"v_add_u32 v{vAK}, 0x400, v{vAK}")
    g(f"v_add_u32 v{vAV}, v{vINC}, v{vAV}")
    g("s_nop 15")
    exps(g, S0, 0, 16)
    g("s_nop 1")
    smf(g, ACC1, VA[0], S0)
    smf(g, ACC1, VB[0], S0 + 8)
    g(f"s_sub_u32 s{sCNT}, s{sCNT}, 1")
    g(f"s_cmp_lg_u32 s{sCNT}, 0")
    g("s_cbranch_scc1 L_s2")
    g("s_nop 15")
    fin(g, ACC1, None, OA, sOFF, vT)
    g(f"s_cmp_lg_u32 s{sIT}, 0")
    g("s_cbranch_scc1 L_end2")
    g(f"s_mov_b32 s{sIT}, 1")
    g(f"s_mov_b32 s{sOFF}, s{sQ0OFF}")
    for i in range(4): g(f"v_mov_b32 v{Q0+i}, v{Q1+i}")
    g("s_branch L_s0")
    g.label("L_end2")
    g("s_endpgm")
    g.L.append('.section .rodata,"a"')
    g.L.append(".p2align 6")
    g.L.append(f".amdhsa_kernel {NAME}_kernel")
    g.L.append(f"  .amdhsa_next_free_vgpr {NVGPR}")
    g.L.append(f"  .amdhsa_next_free_sgpr 100")
    g.L.append(f"  .amdhsa_accum_offset {(NVGPR+3)//4*4}")
    g.L.append("  .amdhsa_group_segment_fixed_size 0")
    g.L.append("  .amdhsa_kernarg_size 48")
    g.L.append("  .amdhsa_user_sgpr_count 2")
    g.L.append("  .amdhsa_user_sgpr_kernarg_segment_ptr 1")
    g.L.append("  .amdhsa_system_sgpr_workgroup_id_x 1")
    g.L.append(".end_amdhsa_kernel")
    return "\n".join(g.L) + "\n"

def parse(argv=None):
    ap = argparse.ArgumentParser()
    ap.add_argument("-o", default=f"cdna_kernels/{NAME}.s")
    ap.add_argument("--stamps", action="store_true")
    ap.add_argument("--stampbars", action="store_true")
    ap.add_argument("--force-slow", action="store_true")
    ap.add_argument("--pre", type=int, default=3)
    ap.add_argument("--dper", type=int, default=3)
    ap.add_argument("--prio", type=int, default=1)
    ap.add_argument("--warm", type=int, default=0)
    ap.add_argument("--zacc", type=int, default=1)
    ap.add_argument("--bars", default="1:4,6:8,14:16")
    ap.add_argument("--flips", default="11,26,56")
    ap.add_argument("--stampat", default="")
    ap.add_argument("--stampfin", action="store_true")
    ap.add_argument("--lite", action="store_true")
    ap.add_argument("--rot", type=int, default=0)
    ap.add_argument("--pad", type=int, default=0)
    ap.add_argument("--stflags", default=" nt")
    a = ap.parse_args(argv)
    a.bars = [tuple(map(int, x.split(":"))) for x in a.bars.split(",")]
    a.flips = [int(x) for x in a.flips.split(",")]
    a.stampat = [int(x) for x in a.stampat.split(",")] if a.stampat else []
    return a
if __name__ == "__main__":
    a = parse()
    open(a.o, "w").write(build(a))
```

```python
import sys, argparse

NAME = "standalone__fused_io_aware_attn__prompt"

HEADER = """; Kernarg layout for this problem (48 bytes, ptrs only, base s[0:1]):
"""

DOC = """;
"""

L_ONES = 0
L_K = 8192
L_V = L_K + 65536
L_X = L_V + 65536
XSLOT = 2304
LDS_BYTES = L_X + 8 * XSLOT

vF = 1; vL16 = 2; vAK = 3; vAV = 4; vINC = 5; vIDX = 6
vXW = 7; vXW4 = 8; vXR = 9; vXR4 = 10; vD = 11
vT = 12
Q0 = 20; Q1 = 24
KF = [28, 32]; VA = [36, 40]; VB = [44, 48]
S0 = 52; S1 = 68; ACC0 = 84; ACC1 = 100
PA = 116
CB = 116
OA = 132
vQW = 136; vQR = 137
NVGPR = 138
sQ, sK, sV, sO = 4, 6, 8, 10
SRDD, SRDO = 12, 16
sW, sHEAD, sQP, sKH, sREG = 20, 21, 22, 23, 24
sQOWN, sKEEP = 25, 26
sM = 28
sT0, sT1 = 30, 31
sCNT = 32
sTS = 44

def r(base, n): return f"v[{base}:{base+n-1}]"

class Gen:
    def __init__(self, o):
        self.L = []; self.o = o; self.nst = 0; self.nl = 0
    def __call__(self, s): self.L.append("    " + s)
    def label(self, s): self.L.append(s + ":")
    def c(self, s): self.L.append("    ; " + s)
    def stamp(self):
        if self.o.stamps:
            i = sTS + 2 * self.nst
            self(f"s_memtime s[{i}:{i+1}]")
            self.nst += 1
    def newlabel(self):
        self.nl += 1
        return f"L_t{self.nl}"

def exps(g, S, lo, hi):
    for i in range(lo, hi): g(f"v_exp_f32 v{S+i}, v{S+i}")
def smf(g, acc, A, B): g(f"v_smfmac_f32_32x32x32_bf16 {r(acc,16)}, {r(A,4)}, {r(B,8)}, v{vIDX}")
def qk(g, S, K, Q, C="0"): g(f"v_mfma_f32_32x32x16_bf16 {r(S,16)}, {r(K,4)}, {r(Q,4)}, {C}")
def trd(g, dst, off): g(f"ds_read_b64_tr_b16 {r(dst,2)}, v{vAV} offset:{off}")
def krd(g, dst, off): g(f"ds_read_b128 {r(dst,4)}, v{vAK} offset:{off}")
DMA_A = "s_addk_i32 m0, 0x800"
DMA_B = f"buffer_load_dwordx4 v{vD}, s[{SRDD}:{SRDD+3}], m0 offen lds"
VPER = 4

def body(g, kt, extra):
    f = kt & 1
    vo = ((kt % VPER) + 1) * 1024
    ko = (kt + 2) * 1024
    def X(m):
        for s in extra.get(m, []): g(s)
    exps(g, S1, 12, 16)
    exps(g, S0, 0, 2)
    smf(g, ACC1, VB[f ^ 1], S1 + 8)
    trd(g, VA[f ^ 1], vo)
    X(0)
    exps(g, S0, 2, 7)
    qk(g, S1, KF[f], Q1)
    trd(g, VA[f ^ 1] + 2, vo + 128)
    X(1)
    exps(g, S0, 7, 12)
    smf(g, ACC0, VA[f], S0)
    krd(g, KF[f], ko)
    X(2)
    exps(g, S0, 12, 16)
    exps(g, S1, 0, 2)
    smf(g, ACC0, VB[f], S0 + 8)
    trd(g, VB[f ^ 1], vo + 512)
    X(3)
    exps(g, S1, 2, 7)
    qk(g, S0, KF[f ^ 1], Q0)
    trd(g, VB[f ^ 1] + 2, vo + 640)
    X(4)
    exps(g, S1, 7, 12)
    smf(g, ACC1, VA[f], S1)
    g("s_waitcnt lgkmcnt(0)")
    X(5)
    if kt % VPER == VPER - 1:
        g(f"v_add_u32 v{vAV}, v{vINC}, v{vAV}")

def body0(g, extra):
    st = g.o.stamps
    def X(m):
        for s in extra.get(m, []): g(s)
    X(0)
    g("s_waitcnt lgkmcnt(5)" if not st else "s_waitcnt lgkmcnt(0)")
    qk(g, S1, KF[0], Q1)
    X(1)
    g("s_waitcnt lgkmcnt(3)" if not st else "s_nop 0")
    smf(g, ACC0, VA[0], S0)
    X(2)
    g("s_waitcnt lgkmcnt(0)")
    smf(g, ACC0, VB[0], S0 + 8)
    trd(g, VA[1], 1024)
    trd(g, VA[1] + 2, 1024 + 128)
    if g.o.b0need > 1: krd(g, KF[0], 2048)
    X(3)
    g("s_nop 5")
    exps(g, S1, 0, 7)
    qk(g, S0, KF[1], Q0)
    trd(g, VB[1], 1024 + 512)
    trd(g, VB[1] + 2, 1024 + 640)
    X(4)
    exps(g, S1, 7, 12)
    smf(g, ACC1, VA[0], S1)
    g("s_waitcnt lgkmcnt(0)")
    X(5)

def tail(g, extra):
    vo = ((30 % VPER) + 1) * 1024
    def X(m):
        for s in extra.get(m, []): g(s)
    exps(g, S1, 12, 16)
    exps(g, S0, 0, 2)
    smf(g, ACC1, VB[1], S1 + 8)
    trd(g, VA[1], vo)
    X(0)
    exps(g, S0, 2, 7)
    qk(g, S1, KF[1], Q0)
    trd(g, VA[1] + 2, vo + 128)
    X(1)
    exps(g, S0, 7, 12)
    smf(g, ACC0, VA[0], S0)
    trd(g, VB[1], vo + 512)
    X(2)
    exps(g, S0, 12, 16)
    exps(g, S1, 0, 2)
    smf(g, ACC0, VB[0], S0 + 8)
    trd(g, VB[1] + 2, vo + 640)
    X(3)
    exps(g, S1, 2, 7)
    qk(g, S0, KF[0], Q1)
    g("s_waitcnt lgkmcnt(0)")
    X(4)
    exps(g, S1, 7, 12)
    smf(g, ACC0, VA[1], S1)
    g("s_nop 0")
    X(5)
    exps(g, S1, 12, 16)
    exps(g, S0, 0, 2)
    smf(g, ACC0, VB[1], S1 + 8)
    exps(g, S0, 2, 7)
    qk(g, S1, KF[1], Q1)
    exps(g, S0, 7, 12)
    smf(g, ACC1, VA[0], S0)
    g.c("hand the partial result of tile Q0 to the partner wave")
    g(f"ds_write_b128 v{vXW}, {r(ACC0,4)}")
    g(f"ds_write_b128 v{vXW}, {r(ACC0+4,4)} offset:1024")
    g(f"ds_write_b32 v{vXW4}, v{ACC0+8} offset:2048")
    exps(g, S0, 12, 16)
    exps(g, S1, 0, 2)
    smf(g, ACC1, VB[0], S0 + 8)
    g("s_waitcnt lgkmcnt(0)")
    if g.o.stampbars: g.stamp()
    g("s_barrier")
    if g.o.stampbars: g.stamp()
    g(f"ds_read_b128 {r(PA,4)}, v{vXR}")
    g(f"ds_read_b128 {r(PA+4,4)}, v{vXR} offset:1024")
    g(f"ds_read_b32 v{PA+8}, v{vXR4} offset:2048")
    exps(g, S1, 2, 12)
    smf(g, ACC1, VA[1], S1)
    exps(g, S1, 12, 16)
    g("s_waitcnt lgkmcnt(0)")
    g("s_nop 0")
    smf(g, ACC1, VB[1], S1 + 8)

def scale_q(g, Q):
    for i in range(4):
        a, b = vT + 2 * i, vT + 2 * i + 1
        g(f"v_lshlrev_b32 v{a}, 16, v{Q+i}")
        g(f"v_and_b32 v{b}, 0xffff0000, v{Q+i}")
    for i in range(8):
        g(f"v_mul_f32 v{vT+i}, 0x3eb8aa3b, v{vT+i}")
    for i in range(4):
        g(f"v_cvt_pk_bf16_f32 v{Q+i}, v{vT+2*i}, v{vT+2*i+1}")

def prio_hi_f(g):
    l = g.newlabel()
    g(f"s_cmp_eq_u32 s{sKH}, 0")
    g(f"s_cbranch_scc1 {l}")
    g("s_setprio 1")
    g.label(l)

def fin(g, acc, P):
    rc = vT
    O = OA
    if P is not None:
        g(f"v_add_f32 v{acc+8}, v{acc+8}, v{P+8}")
        g(f"v_pk_add_f32 {r(acc,2)}, {r(acc,2)}, {r(P,2)}")
        g(f"v_rcp_f32 v{rc}, v{acc+8}")
        for i in range(1, 4): g(f"v_pk_add_f32 {r(acc+2*i,2)}, {r(acc+2*i,2)}, {r(P+2*i,2)}")
    else:
        g(f"v_rcp_f32 v{rc}, v{acc+8}")
        g("s_nop 0")
    for i in range(4): g(f"v_pk_mul_f32 {r(acc+2*i,2)}, {r(acc+2*i,2)}, {r(rc,2)} op_sel_hi:[1,0]")
    for i in (0, 2, 1, 3): g(f"v_cvt_pk_bf16_f32 v{O+i}, v{acc+2*i}, v{acc+2*i+1}")
    g("s_nop 0")
    g(f"v_permlane32_swap_b32 v{O}, v{O+2}")
    g(f"v_permlane32_swap_b32 v{O+1}, v{O+3}")
    g(f"buffer_store_dwordx4 {r(O,4)}, v{vF}, s[{SRDO}:{SRDO+3}], s{sKEEP} offen{g.o.stflags}")

def build(o):
    g = Gen(o)
    g.L.append(HEADER.rstrip("\n"))
    g.L.append(f"; @launch grid=(256,1,1) block=(512,1,1) lds={LDS_BYTES}")
    g.L.append(DOC.rstrip("\n"))
    g.L.append('.amdgcn_target "amdgcn-amd-amdhsa--gfx950"')
    g.L.append(".text")
    if o.koff >= 0:
        g.L.append(".p2align 12")
        if o.koff: g.L.append(f".fill {o.koff // 4}, 4, 0xbf810000")
    g.L.append(f".globl {NAME}_kernel")
    g.L.append(".p2align 8")
    g.L.append(f".type {NAME}_kernel,@function")
    g.label(f"{NAME}_kernel")
    g("s_cmp_ge_u32 s2, 256")
    g("s_cbranch_scc1 L_end")
    g("s_load_dwordx8 s[4:11], s[0:1], 0")
    if o.stamps or o.lite:
        g(f"s_load_dwordx2 s[42:43], s[0:1], 40")
        g("s_memrealtime s[90:91]")
    g.stamp()
    g(f"v_lshrrev_b32 v{vT}, 6, v0")
    g(f"v_and_b32 v{vT+1}, 31, v0")
    g(f"v_readfirstlane_b32 s{sW}, v{vT}")
    g(f"v_and_b32 v{vT+2}, 63, v0")
    g(f"v_lshlrev_b32 v{vT+1}, 5, v{vT+1}")
    g(f"v_bfe_u32 v{vT+3}, v0, 5, 1")
    g(f"v_lshl_add_u32 v{vF}, v{vT+3}, 4, v{vT+1}")
    g(f"v_lshlrev_b32 v{vL16}, 4, v{vT+2}")
    g.c("head = (wg&7)*4 + (wg>>6), qblock = (wg>>3)&7, qp = w&3, kh = w>>2")
    g(f"s_and_b32 s{sHEAD}, s2, 7")
    g(f"s_lshr_b32 s{sT0}, s2, 6")
    g(f"s_lshl_b32 s{sHEAD}, s{sHEAD}, 2")
    g(f"s_add_u32 s{sHEAD}, s{sHEAD}, s{sT0}")
    g(f"s_lshl_b32 s{sHEAD}, s{sHEAD}, 16")
    g(f"s_bfe_u32 s{sT0}, s2, 0x30003")
    g(f"s_lshl_b32 s{sT0}, s{sT0}, 13")
    g(f"s_add_u32 s{sQOWN}, s{sT0}, s{sHEAD}")
    g(f"s_and_b32 s{sQP}, s{sW}, 3")
    g(f"s_lshr_b32 s{sKH}, s{sW}, 2")
    g(f"s_lshl_b32 s{sT0}, s{sQP}, 11")
    g(f"s_add_u32 s{sQOWN}, s{sQOWN}, s{sT0}")
    g(f"s_lshl_b32 s{sT0}, s{sKH}, 10")
    g(f"s_add_u32 s{sQOWN}, s{sQOWN}, s{sT0}")
    g(f"v_add_u32 v{vT+4}, s{sQOWN}, v{vF}")
    g(f"s_lshl_b32 s{sT0}, s{sKH}, 15")
    g(f"s_add_u32 s{sT1}, s{sT0}, s{sHEAD}")
    g(f"v_add_u32 v{vT+5}, s{sT1}, v{vF}")
    g(f"s_mov_b32 s{SRDD+2}, {L_V + 65536}")
    g(f"s_mov_b32 s{SRDD+3}, 0x20000")
    g(f"s_lshr_b32 s{sT1}, s{sQP}, 1")
    g(f"s_lshl_b32 s{sT1}, s{sT1}, 10")
    g(f"s_add_u32 s{sT0}, s{sT0}, s{sT1}")
    g(f"s_and_b32 s{sREG}, s{sW}, 1")
    g(f"s_lshl_b32 s{sREG}, s{sREG}, 16")
    g(f"s_add_u32 s{sREG}, s{sREG}, {L_K}")
    g(f"s_add_u32 m0, s{sT0}, s{sREG}")
    g(f"s_bitcmp1_b32 s{sW}, 0")
    g(f"s_cselect_b64 s[{sM}:{sM+1}], -1, 0")
    g(f"v_cndmask_b32 v{vD}, v{vF}, v{vL16}, s[{sM}:{sM+1}]")
    g("s_waitcnt lgkmcnt(0)")
    g.stamp()
    g(f"global_load_dwordx4 {r(Q0,4)}, v{vT+4}, s[{sQ}:{sQ+1}]")
    g(f"global_load_dwordx4 {r(KF[0],4)}, v{vT+5}, s[{sK}:{sK+1}]")
    g.c("DMA descriptor: base = (k|v) + head offset - LDS region offset, so that soffset == m0")
    g(f"s_cselect_b64 s[{SRDD}:{SRDD+1}], s[{sV}:{sV+1}], s[{sK}:{sK+1}]")
    g(f"s_add_u32 s{SRDD}, s{SRDD}, s{sHEAD}")
    g(f"s_addc_u32 s{SRDD+1}, s{SRDD+1}, 0")
    g(f"s_sub_u32 s{SRDD}, s{SRDD}, s{sREG}")
    g(f"s_subb_u32 s{SRDD+1}, s{SRDD+1}, 0")
    g(DMA_B)
    g.stamp()
    g(f"s_mov_b32 s{SRDO}, s{sO}")
    g(f"s_mov_b32 s{SRDO+1}, s{sO+1}")
    g(f"s_mov_b32 s{SRDO+2}, 0x200000")
    g(f"s_mov_b32 s{SRDO+3}, 0x20000")
    g(f"s_xor_b32 s{sKEEP}, s{sQOWN}, 1024")
    g.c("constant A rows for the row sum (rows 16 and 20 = 1.0, the other padding rows 0)")
    g(f"v_and_b32 v{vT+4}, 1, v0")
    g(f"v_subrev_u32 v{vT+4}, 1, v{vT+4}")
    g(f"v_and_b32 v{vT+4}, 0x3f80, v{vT+4}")
    g(f"v_mov_b32 v{vT+5}, 0")
    g(f"v_mov_b32 v{vT+6}, v{vT+4}")
    g(f"v_mov_b32 v{vT+7}, 0")
    g(f"s_lshl_b32 s{sT0}, s{sW}, 10")
    g(f"v_add_u32 v{vT}, s{sT0}, v{vL16}")
    g(f"ds_write_b128 v{vT}, {r(vT+4,4)} offset:{L_ONES}")
    g(f"v_add_u32 v{vQW}, {L_X}, v{vT}")
    g(f"v_xor_b32 v{vQR}, 0x1000, v{vT}")
    g(f"v_add_u32 v{vQR}, {L_X}, v{vQR}")
    g(f"s_lshl_b32 s{sT0}, s{sKH}, 15")
    g(f"s_add_u32 s{sT1}, s{sT0}, {L_K}")
    g(f"v_add_u32 v{vAK}, s{sT1}, v{vL16}")
    g(f"v_and_b32 v{vT}, 15, v0")
    g(f"v_lshlrev_b32 v{vT}, 3, v{vT}")
    g(f"v_bfe_u32 v{vT+1}, v0, 5, 1")
    g(f"v_lshlrev_b32 v{vT+1}, 8, v{vT+1}")
    g(f"s_add_u32 s{sT1}, s{sT0}, {L_V}")
    g(f"v_add_u32 v{vT+1}, s{sT1}, v{vT+1}")
    g(f"v_mov_b32 v{vT+2}, {L_ONES + 128}")
    g(f"v_and_b32 v{vT+3}, 16, v0")
    g(f"v_cmp_eq_u32 vcc, 0, v{vT+3}")
    g(f"v_mov_b32 v{vT+3}, {VPER*1024}")
    g(f"v_mov_b32 v{vIDX}, 0xdddddddd")
    g(f"v_cndmask_b32 v{vT+1}, v{vT+2}, v{vT+1}, vcc")
    g(f"v_cndmask_b32 v{vINC}, 0, v{vT+3}, vcc")
    g(f"v_add_u32 v{vAV}, v{vT}, v{vT+1}")
    npre = o.pre
    for i in range(npre):
        g(DMA_A); g("s_nop 0"); g(DMA_B)
    g(f"s_mul_i32 s{sT0}, s{sW}, {XSLOT}")
    g(f"s_xor_b32 s{sT1}, s{sW}, 4")
    g(f"s_mul_i32 s{sT1}, s{sT1}, {XSLOT}")
    g(f"s_add_u32 s{sT0}, s{sT0}, {L_X}")
    g(f"s_add_u32 s{sT1}, s{sT1}, {L_X}")
    g(f"v_lshrrev_b32 v{vT}, 2, v{vL16}")
    g(f"v_add_u32 v{vXW}, s{sT0}, v{vL16}")
    g(f"v_add_u32 v{vXR}, s{sT1}, v{vL16}")
    g(f"v_add_u32 v{vXW4}, s{sT0}, v{vT}")
    g(f"v_add_u32 v{vXR4}, s{sT1}, v{vT}")
    for i in range(16): g(f"v_mov_b32 v{ACC0+i}, 0")
    for i in range(16): g(f"v_mov_b32 v{ACC1+i}, 0")
    g.stamp()
    g(f"s_waitcnt vmcnt({2 + npre})")
    g.stamp()
    scale_q(g, Q0)
    g(f"ds_write_b128 v{vQW}, {r(Q0,4)}")
    g(f"s_waitcnt vmcnt({1 + npre})")
    g.c("first tile before the barrier (K fragment loaded directly)")
    qk(g, S0, KF[0], Q0)
    g("s_nop 11")
    exps(g, S0, 0, 16)
    g(f"s_waitcnt vmcnt({npre + 1 - o.b0need}) lgkmcnt(0)")
    g.stamp()
    g("s_barrier")
    g.stamp()
    if o.stamps: g("s_memrealtime s[94:95]")
    g(f"ds_read_b128 {r(Q1,4)}, v{vQR}")
    trd(g, VA[0], 0)
    trd(g, VA[0] + 2, 128)
    trd(g, VB[0], 512)
    trd(g, VB[0] + 2, 640)
    krd(g, KF[1], 1024)
    issued = 1 + npre
    covered = o.b0need
    if o.b0need > 1 and o.prio: prio_hi_f(g)
    bars = dict(o.bars)
    for kt in range(31):
        extra = {}
        if kt in bars:
            need = bars[kt]
            assert need <= issued
            g(f"s_waitcnt vmcnt({issued - need})")
            g("s_barrier")
            covered = need
            if o.stampbars: g.stamp()
            if kt == 1:
                krd(g, KF[0], 2048)
                extra.setdefault(3, []).append("s_waitcnt lgkmcnt(4)")
            if o.prio: prio_hi_f(g)
        if kt >= 1: assert min(kt + 2, 31) < 2 * covered, (kt, covered)
        nd = o.dsched[kt] if kt < len(o.dsched) else o.dper
        for a, b in ((0, 1), (2, 3), (4, 5))[:nd]:
            if issued < 16:
                extra.setdefault(a, []).append(DMA_A)
                extra.setdefault(b, []).append(DMA_B)
                issued += 1
        if o.prio:
            for (fk, fm) in o.flips:
                if fk == kt: extra.setdefault(fm, []).append("s_setprio 0")
        if kt == 0: body0(g, extra)
        elif kt < 30: body(g, kt, extra)
        else: tail(g, extra)
    assert issued == 16
    g.stamp()
    if o.stamps: g("s_memrealtime s[96:97]")
    g("s_nop 11")
    fin(g, ACC1, PA)
    g.c("run-time safety check of the stand-in max: 1 <= l <= 2^80 and all outputs finite")
    g(f"v_cmp_le_f32 vcc, 1.0, v{ACC1+8}")
    g(f"v_pk_add_f32 {r(ACC1,2)}, {r(ACC1,2)}, {r(ACC1+2,2)}")
    g(f"s_mov_b64 s[{sT0}:{sT0+1}], vcc")
    g(f"v_cmp_ge_f32 vcc, 0x67800000, v{ACC1+8}")
    g(f"v_pk_add_f32 {r(ACC1+4,2)}, {r(ACC1+4,2)}, {r(ACC1+6,2)}")
    g(f"v_mov_b32 v{vT+4}, 0x1f8")
    g(f"s_and_b64 s[{sT0}:{sT0+1}], s[{sT0}:{sT0+1}], vcc")
    g(f"v_pk_add_f32 {r(ACC1,2)}, {r(ACC1,2)}, {r(ACC1+4,2)}")
    g(f"v_add_f32 v{ACC1}, v{ACC1}, v{ACC1+1}")
    g(f"v_cmp_class_f32 vcc, v{ACC1}, v{vT+4}")
    g(f"s_and_b64 s[{sT0}:{sT0+1}], s[{sT0}:{sT0+1}], vcc")
    if o.force_slow:
        g(f"s_mov_b64 s[{sT0}:{sT0+1}], 0")
    g(f"s_cmp_eq_u64 s[{sT0}:{sT0+1}], exec")
    g("s_cbranch_scc0 L_slow")
    if o.lite:
        g("s_waitcnt vmcnt(0)")
        g("s_memrealtime s[92:93]")
        g(f"s_lshl_b32 s{sT0}, s2, 3")
        g(f"s_add_u32 s{sT0}, s{sT0}, s{sW}")
        g(f"s_lshl_b32 s{sT0}, s{sT0}, 3")
        g(f"v_mov_b32 v{vT}, s{sT0}")
        g("s_waitcnt lgkmcnt(0)")
        g(f"v_mov_b32 v{vT+2}, s90")
        g(f"v_mov_b32 v{vT+3}, s92")
        g(f"global_store_dwordx2 v{vT}, v[{vT+2}:{vT+3}], s[42:43]")
    if o.stamps:
        g.stamp()
        g("s_memrealtime s[92:93]")
        g("s_waitcnt lgkmcnt(0)")
        g("s_barrier")
        g(f"s_lshl_b32 s{sT0}, s2, 3")
        g(f"s_add_u32 s{sT0}, s{sT0}, s{sW}")
        g(f"s_lshl_b32 s{sT0}, s{sT0}, 8")
        g(f"v_mov_b32 v{vT}, s{sT0}")
        regs = [sTS + 2 * i for i in range(g.nst)] + [90, 92, 94, 96]
        for i, sr in enumerate(regs):
            g(f"v_mov_b32 v{vT+2}, s{sr}")
            g(f"v_mov_b32 v{vT+3}, s{sr+1}")
            g(f"global_store_dwordx2 v{vT}, v[{vT+2}:{vT+3}], s[42:43] offset:{8*i}")
            g("s_nop 1")
        sys.stderr.write(f"nstamps={g.nst}\n")
    g.label("L_end")
    g("s_endpgm")
    g.label("L_slow")
    g.c("exact path: this wave recomputes its q tile (Q1) over all 2048 keys with the true row max")
    g("s_waitcnt vmcnt(0)")
    g.c("pass 1: true row max")
    g(f"v_add_u32 v{vAK}, {L_K}, v{vL16}")
    g(f"v_mov_b32 v{vT}, 0xff800000")
    g(f"s_mov_b32 s{sCNT}, 64")
    g.label("L_s1")
    krd(g, KF[0], 0)
    g("s_waitcnt lgkmcnt(0)")
    qk(g, S0, KF[0], Q1)
    g(f"v_add_u32 v{vAK}, 0x400, v{vAK}")
    g("s_nop 15")
    for i in range(8):
        g(f"v_max3_f32 v{vT}, v{vT}, v{S0+2*i}, v{S0+2*i+1}")
    g(f"s_sub_u32 s{sCNT}, s{sCNT}, 1")
    g(f"s_cmp_lg_u32 s{sCNT}, 0")
    g("s_cbranch_scc1 L_s1")
    g(f"v_mov_b32 v{vT+1}, v{vT}")
    g("s_nop 1")
    g(f"v_permlane32_swap_b32 v{vT}, v{vT+1}")
    g("s_nop 1")
    g(f"v_max_f32 v{vT}, v{vT}, v{vT+1}")
    for i in range(16): g(f"v_sub_f32 v{CB+i}, 0, v{vT}")
    for i in range(16): g(f"v_mov_b32 v{ACC1+i}, 0")
    g.c("pass 2: exp2(s - max), PV and row sum")
    g(f"v_add_u32 v{vAK}, {L_K}, v{vL16}")
    g(f"v_and_b32 v{vT}, 15, v0")
    g(f"v_lshlrev_b32 v{vT}, 3, v{vT}")
    g(f"v_bfe_u32 v{vT+1}, v0, 5, 1")
    g(f"v_lshlrev_b32 v{vT+1}, 8, v{vT+1}")
    g(f"v_add_u32 v{vT+1}, {L_V}, v{vT+1}")
    g(f"v_mov_b32 v{vT+2}, {L_ONES + 128}")
    g(f"v_cmp_ne_u32 vcc, 0, v{vINC}")
    g(f"v_mov_b32 v{vT+3}, 0x400")
    g("s_nop 0")
    g(f"v_cndmask_b32 v{vT+1}, v{vT+2}, v{vT+1}, vcc")
    g(f"v_cndmask_b32 v{vINC}, 0, v{vT+3}, vcc")
    g(f"v_add_u32 v{vAV}, v{vT}, v{vT+1}")
    g(f"s_mov_b32 s{sCNT}, 64")
    g.label("L_s2")
    krd(g, KF[0], 0)
    trd(g, VA[0], 0)
    trd(g, VA[0] + 2, 128)
    trd(g, VB[0], 512)
    trd(g, VB[0] + 2, 640)
    g("s_waitcnt lgkmcnt(0)")
    qk(g, S0, KF[0], Q1, r(CB, 16))
    g(f"v_add_u32 v{vAK}, 0x400, v{vAK}")
    g(f"v_add_u32 v{vAV}, v{vINC}, v{vAV}")
    g("s_nop 15")
    exps(g, S0, 0, 16)
    g("s_nop 1")
    smf(g, ACC1, VA[0], S0)
    smf(g, ACC1, VB[0], S0 + 8)
    g(f"s_sub_u32 s{sCNT}, s{sCNT}, 1")
    g(f"s_cmp_lg_u32 s{sCNT}, 0")
    g("s_cbranch_scc1 L_s2")
    g("s_nop 15")
    fin(g, ACC1, None)
    g("s_endpgm")
    g.L.append('.section .rodata,"a"')
    g.L.append(".p2align 6")
    g.L.append(f".amdhsa_kernel {NAME}_kernel")
    g.L.append(f"  .amdhsa_next_free_vgpr {NVGPR}")
    g.L.append(f"  .amdhsa_next_free_sgpr {100 if (o.stamps or o.lite) else 40}")
    g.L.append(f"  .amdhsa_accum_offset {(NVGPR+3)//4*4}")
    g.L.append("  .amdhsa_group_segment_fixed_size 0")
    g.L.append("  .amdhsa_kernarg_size 48")
    g.L.append("  .amdhsa_user_sgpr_count 2")
    g.L.append("  .amdhsa_user_sgpr_kernarg_segment_ptr 1")
    g.L.append("  .amdhsa_system_sgpr_workgroup_id_x 1")
    g.L.append(".end_amdhsa_kernel")
    return "\n".join(g.L) + "\n"

def parse(argv=None):
    ap = argparse.ArgumentParser()
    ap.add_argument("-o", default=f"cdna_kernels/{NAME}.s")
    ap.add_argument("--stamps", action="store_true")
    ap.add_argument("--stampbars", action="store_true")
    ap.add_argument("--lite", action="store_true")
    ap.add_argument("--force-slow", action="store_true")
    ap.add_argument("--pre", type=int, default=3)
    ap.add_argument("--dper", type=int, default=1)
    ap.add_argument("--prio", type=int, default=1)
    ap.add_argument("--bars", default="1:4,6:8,14:16")
    ap.add_argument("--flips", default="5.2,12.5,28.5")
    ap.add_argument("--stflags", default=" nt")
    ap.add_argument("--dsched", default="")
    ap.add_argument("--koff", type=int, default=-1)
    ap.add_argument("--b0need", type=int, default=1)
    a = ap.parse_args(argv)
    a.bars = [tuple(map(int, x.split(":"))) for x in a.bars.split(",")]
    a.flips = [tuple(map(int, x.split("."))) for x in a.flips.split(",")]
    a.dsched = [int(x) for x in a.dsched.split(",")] if a.dsched else []
    return a

if __name__ == "__main__":
    a = parse()
    open(a.o, "w").write(build(a))
```

```python
import sys, argparse

NAME = "standalone__fused_io_aware_attn__prompt"

HEADER = """; Kernarg layout for this problem (48 bytes, ptrs only, base s[0:1]):
"""

DOC = """;
"""

L_ONES = 0
L_K = 8192
L_V = L_K + 65536
L_X = L_V + 65536
XSLOT = 2304
LDS_BYTES = L_X + 8 * XSLOT

vF = 1; vL16 = 2; vAK = 3; vAV = 4; vINC = 5; vIDX = 6
vXW = 7; vXW4 = 8; vXR = 9; vXR4 = 10; vD = 11
vT = 12
Q0 = 20; Q1 = 24
KF = [28, 32]; VA = [36, 40]; VB = [44, 48]
S0 = 52; S1 = 68; ACC0 = 84; ACC1 = 100
PA = 116
CB = 116
OA = 132
vQW = 136; vQR = 137
NVGPR = 138
sQ, sK, sV, sO = 4, 6, 8, 10
SRDD, SRDO = 12, 16
sW, sHEAD, sQP, sKH, sREG = 20, 21, 22, 23, 24
sQOWN, sKEEP = 25, 26
sM = 28
sT0, sT1 = 30, 31
sCNT = 32
sTS = 44

def r(base, n): return f"v[{base}:{base+n-1}]"

class Gen:
    def __init__(self, o):
        self.L = []; self.o = o; self.nst = 0; self.nl = 0
    def __call__(self, s): self.L.append("    " + s)
    def label(self, s): self.L.append(s + ":")
    def c(self, s): self.L.append("    ; " + s)
    def stamp(self):
        if self.o.stamps:
            i = sTS + 2 * self.nst
            self(f"s_memtime s[{i}:{i+1}]")
            self.nst += 1
    def newlabel(self):
        self.nl += 1
        return f"L_t{self.nl}"

def exps(g, S, lo, hi):
    for i in range(lo, hi): g(f"v_exp_f32 v{S+i}, v{S+i}")
def smf(g, acc, A, B): g(f"v_smfmac_f32_32x32x32_bf16 {r(acc,16)}, {r(A,4)}, {r(B,8)}, v{vIDX}")
def qk(g, S, K, Q, C="0"): g(f"v_mfma_f32_32x32x16_bf16 {r(S,16)}, {r(K,4)}, {r(Q,4)}, {C}")
def trd(g, dst, off): g(f"ds_read_b64_tr_b16 {r(dst,2)}, v{vAV} offset:{off}")
def krd(g, dst, off): g(f"ds_read_b128 {r(dst,4)}, v{vAK} offset:{off}")
DMA_A = "s_addk_i32 m0, 0x800"
DMA_B = f"buffer_load_dwordx4 v{vD}, s[{SRDD}:{SRDD+3}], m0 offen lds"
VPER = 4

def body(g, kt, extra):
    f = kt & 1
    vo = ((kt % VPER) + 1) * 1024
    ko = (kt + 2) * 1024
    def X(m):
        for s in extra.get(m, []): g(s)
    exps(g, S1, 12, 16)
    exps(g, S0, 0, 2)
    smf(g, ACC1, VB[f ^ 1], S1 + 8)
    trd(g, VA[f ^ 1], vo)
    X(0)
    exps(g, S0, 2, 7)
    qk(g, S1, KF[f], Q1)
    trd(g, VA[f ^ 1] + 2, vo + 128)
    X(1)
    exps(g, S0, 7, 12)
    smf(g, ACC0, VA[f], S0)
    krd(g, KF[f], ko)
    X(2)
    exps(g, S0, 12, 16)
    exps(g, S1, 0, 2)
    smf(g, ACC0, VB[f], S0 + 8)
    trd(g, VB[f ^ 1], vo + 512)
    X(3)
    exps(g, S1, 2, 7)
    qk(g, S0, KF[f ^ 1], Q0)
    trd(g, VB[f ^ 1] + 2, vo + 640)
    X(4)
    exps(g, S1, 7, 12)
    smf(g, ACC1, VA[f], S1)
    g("s_waitcnt lgkmcnt(0)")
    X(5)
    if kt % VPER == VPER - 1:
        g(f"v_add_u32 v{vAV}, v{vINC}, v{vAV}")

def body0(g, extra):
    st = g.o.stamps
    def X(m):
        for s in extra.get(m, []): g(s)
    X(0)
    g("s_waitcnt lgkmcnt(5)" if not st else "s_waitcnt lgkmcnt(0)")
    qk(g, S1, KF[0], Q1)
    X(1)
    g("s_waitcnt lgkmcnt(3)" if not st else "s_nop 0")
    smf(g, ACC0, VA[0], S0)
    X(2)
    g("s_waitcnt lgkmcnt(0)")
    smf(g, ACC0, VB[0], S0 + 8)
    trd(g, VA[1], 1024)
    trd(g, VA[1] + 2, 1024 + 128)
    X(3)
    g("s_nop 5")
    exps(g, S1, 0, 7)
    qk(g, S0, KF[1], Q0)
    trd(g, VB[1], 1024 + 512)
    trd(g, VB[1] + 2, 1024 + 640)
    X(4)
    exps(g, S1, 7, 12)
    smf(g, ACC1, VA[0], S1)
    g("s_waitcnt lgkmcnt(0)")
    X(5)

def tail(g, extra):
    vo = ((30 % VPER) + 1) * 1024
    def X(m):
        for s in extra.get(m, []): g(s)
    exps(g, S1, 12, 16)
    exps(g, S0, 0, 2)
    smf(g, ACC1, VB[1], S1 + 8)
    trd(g, VA[1], vo)
    X(0)
    exps(g, S0, 2, 7)
    qk(g, S1, KF[1], Q0)
    trd(g, VA[1] + 2, vo + 128)
    X(1)
    exps(g, S0, 7, 12)
    smf(g, ACC0, VA[0], S0)
    trd(g, VB[1], vo + 512)
    X(2)
    exps(g, S0, 12, 16)
    exps(g, S1, 0, 2)
    smf(g, ACC0, VB[0], S0 + 8)
    trd(g, VB[1] + 2, vo + 640)
    X(3)
    exps(g, S1, 2, 7)
    qk(g, S0, KF[0], Q1)
    g("s_waitcnt lgkmcnt(0)")
    X(4)
    exps(g, S1, 7, 12)
    smf(g, ACC0, VA[1], S1)
    g("s_nop 0")
    X(5)
    exps(g, S1, 12, 16)
    exps(g, S0, 0, 2)
    smf(g, ACC0, VB[1], S1 + 8)
    exps(g, S0, 2, 7)
    qk(g, S1, KF[1], Q1)
    exps(g, S0, 7, 12)
    smf(g, ACC1, VA[0], S0)
    g.c("hand the partial result of tile Q0 to the partner wave")
    g(f"ds_write_b128 v{vXW}, {r(ACC0,4)}")
    g(f"ds_write_b128 v{vXW}, {r(ACC0+4,4)} offset:1024")
    g(f"ds_write_b32 v{vXW4}, v{ACC0+8} offset:2048")
    exps(g, S0, 12, 16)
    exps(g, S1, 0, 2)
    smf(g, ACC1, VB[0], S0 + 8)
    g("s_waitcnt lgkmcnt(0)")
    if g.o.stampbars: g.stamp()
    g("s_barrier")
    if g.o.stampbars: g.stamp()
    g(f"ds_read_b128 {r(PA,4)}, v{vXR}")
    g(f"ds_read_b128 {r(PA+4,4)}, v{vXR} offset:1024")
    g(f"ds_read_b32 v{PA+8}, v{vXR4} offset:2048")
    exps(g, S1, 2, 12)
    smf(g, ACC1, VA[1], S1)
    exps(g, S1, 12, 16)
    g("s_waitcnt lgkmcnt(0)")
    g("s_nop 0")
    smf(g, ACC1, VB[1], S1 + 8)

def scale_q(g, Q):
    for i in range(4):
        a, b = vT + 2 * i, vT + 2 * i + 1
        g(f"v_lshlrev_b32 v{a}, 16, v{Q+i}")
        g(f"v_and_b32 v{b}, 0xffff0000, v{Q+i}")
    for i in range(8):
        g(f"v_mul_f32 v{vT+i}, 0x3eb8aa3b, v{vT+i}")
    for i in range(4):
        g(f"v_cvt_pk_bf16_f32 v{Q+i}, v{vT+2*i}, v{vT+2*i+1}")

def prio_hi_f(g):
    l = g.newlabel()
    g(f"s_cmp_eq_u32 s{sKH}, 0")
    g(f"s_cbranch_scc1 {l}")
    g("s_setprio 1")
    g.label(l)

def fin(g, acc, P):
    rc = vT
    O = OA
    if P is not None:
        g(f"v_add_f32 v{acc+8}, v{acc+8}, v{P+8}")
        g(f"v_pk_add_f32 {r(acc,2)}, {r(acc,2)}, {r(P,2)}")
        g(f"v_rcp_f32 v{rc}, v{acc+8}")
        for i in range(1, 4): g(f"v_pk_add_f32 {r(acc+2*i,2)}, {r(acc+2*i,2)}, {r(P+2*i,2)}")
    else:
        g(f"v_rcp_f32 v{rc}, v{acc+8}")
        g("s_nop 0")
    for i in range(4): g(f"v_pk_mul_f32 {r(acc+2*i,2)}, {r(acc+2*i,2)}, {r(rc,2)} op_sel_hi:[1,0]")
    for i in (0, 2, 1, 3): g(f"v_cvt_pk_bf16_f32 v{O+i}, v{acc+2*i}, v{acc+2*i+1}")
    g("s_nop 0")
    g(f"v_permlane32_swap_b32 v{O}, v{O+2}")
    g(f"v_permlane32_swap_b32 v{O+1}, v{O+3}")
    g(f"buffer_store_dwordx4 {r(O,4)}, v{vF}, s[{SRDO}:{SRDO+3}], s{sKEEP} offen{g.o.stflags}")

def build(o):
    g = Gen(o)
    g.L.append(HEADER.rstrip("\n"))
    g.L.append(f"; @launch grid=(256,1,1) block=(512,1,1) lds={LDS_BYTES}")
    g.L.append(DOC.rstrip("\n"))
    g.L.append('.amdgcn_target "amdgcn-amd-amdhsa--gfx950"')
    g.L.append(".text")
    if o.koff >= 0:
        g.L.append(".p2align 12")
        if o.koff: g.L.append(f".fill {o.koff // 4}, 4, 0xbf810000")
    g.L.append(f".globl {NAME}_kernel")
    g.L.append(".p2align 8")
    g.L.append(f".type {NAME}_kernel,@function")
    g.label(f"{NAME}_kernel")
    g("s_cmp_ge_u32 s2, 256")
    g("s_cbranch_scc1 L_end")
    g("s_load_dwordx8 s[4:11], s[0:1], 0")
    if o.stamps or o.lite:
        g(f"s_load_dwordx2 s[42:43], s[0:1], 40")
        g("s_memrealtime s[90:91]")
    g.stamp()
    g(f"v_lshrrev_b32 v{vT}, 6, v0")
    g(f"v_and_b32 v{vT+1}, 31, v0")
    g(f"v_readfirstlane_b32 s{sW}, v{vT}")
    g(f"v_and_b32 v{vT+2}, 63, v0")
    g(f"v_lshlrev_b32 v{vT+1}, 5, v{vT+1}")
    g(f"v_bfe_u32 v{vT+3}, v0, 5, 1")
    g(f"v_lshl_add_u32 v{vF}, v{vT+3}, 4, v{vT+1}")
    g(f"v_lshlrev_b32 v{vL16}, 4, v{vT+2}")
    g.c("head = (wg&7)*4 + (wg>>6), qblock = (wg>>3)&7, qp = w&3, kh = w>>2")
    g(f"s_and_b32 s{sHEAD}, s2, 7")
    g(f"s_lshr_b32 s{sT0}, s2, 6")
    g(f"s_lshl_b32 s{sHEAD}, s{sHEAD}, 2")
    g(f"s_add_u32 s{sHEAD}, s{sHEAD}, s{sT0}")
    g(f"s_lshl_b32 s{sHEAD}, s{sHEAD}, 16")
    g(f"s_bfe_u32 s{sT0}, s2, 0x30003")
    g(f"s_lshl_b32 s{sT0}, s{sT0}, 13")
    g(f"s_add_u32 s{sQOWN}, s{sT0}, s{sHEAD}")
    g(f"s_and_b32 s{sQP}, s{sW}, 3")
    g(f"s_lshr_b32 s{sKH}, s{sW}, 2")
    g(f"s_lshl_b32 s{sT0}, s{sQP}, 11")
    g(f"s_add_u32 s{sQOWN}, s{sQOWN}, s{sT0}")
    g(f"s_lshl_b32 s{sT0}, s{sKH}, 10")
    g(f"s_add_u32 s{sQOWN}, s{sQOWN}, s{sT0}")
    g(f"v_add_u32 v{vT+4}, s{sQOWN}, v{vF}")
    g(f"s_lshl_b32 s{sT0}, s{sKH}, 15")
    g(f"s_add_u32 s{sT1}, s{sT0}, s{sHEAD}")
    g(f"v_add_u32 v{vT+5}, s{sT1}, v{vF}")
    g(f"s_mov_b32 s{SRDD+2}, {L_V + 65536}")
    g(f"s_mov_b32 s{SRDD+3}, 0x20000")
    g(f"s_lshr_b32 s{sT1}, s{sQP}, 1")
    g(f"s_lshl_b32 s{sT1}, s{sT1}, 10")
    g(f"s_add_u32 s{sT0}, s{sT0}, s{sT1}")
    g(f"s_and_b32 s{sREG}, s{sW}, 1")
    g(f"s_lshl_b32 s{sREG}, s{sREG}, 16")
    g(f"s_add_u32 s{sREG}, s{sREG}, {L_K}")
    g(f"s_add_u32 m0, s{sT0}, s{sREG}")
    g(f"s_bitcmp1_b32 s{sW}, 0")
    g(f"s_cselect_b64 s[{sM}:{sM+1}], -1, 0")
    g(f"v_cndmask_b32 v{vD}, v{vF}, v{vL16}, s[{sM}:{sM+1}]")
    g("s_waitcnt lgkmcnt(0)")
    g.stamp()
    g(f"global_load_dwordx4 {r(Q0,4)}, v{vT+4}, s[{sQ}:{sQ+1}]")
    g(f"global_load_dwordx4 {r(KF[0],4)}, v{vT+5}, s[{sK}:{sK+1}]")
    g.c("DMA descriptor: base = (k|v) + head offset - LDS region offset, so that soffset == m0")
    g(f"s_cselect_b64 s[{SRDD}:{SRDD+1}], s[{sV}:{sV+1}], s[{sK}:{sK+1}]")
    g(f"s_add_u32 s{SRDD}, s{SRDD}, s{sHEAD}")
    g(f"s_addc_u32 s{SRDD+1}, s{SRDD+1}, 0")
    g(f"s_sub_u32 s{SRDD}, s{SRDD}, s{sREG}")
    g(f"s_subb_u32 s{SRDD+1}, s{SRDD+1}, 0")
    g(DMA_B)
    g.stamp()
    g(f"s_mov_b32 s{SRDO}, s{sO}")
    g(f"s_mov_b32 s{SRDO+1}, s{sO+1}")
    g(f"s_mov_b32 s{SRDO+2}, 0x200000")
    g(f"s_mov_b32 s{SRDO+3}, 0x20000")
    g(f"s_xor_b32 s{sKEEP}, s{sQOWN}, 1024")
    g.c("constant A rows for the row sum (rows 16 and 20 = 1.0, the other padding rows 0)")
    g(f"v_and_b32 v{vT+4}, 1, v0")
    g(f"v_subrev_u32 v{vT+4}, 1, v{vT+4}")
    g(f"v_and_b32 v{vT+4}, 0x3f80, v{vT+4}")
    g(f"v_mov_b32 v{vT+5}, 0")
    g(f"v_mov_b32 v{vT+6}, v{vT+4}")
    g(f"v_mov_b32 v{vT+7}, 0")
    g(f"s_lshl_b32 s{sT0}, s{sW}, 10")
    g(f"v_add_u32 v{vT}, s{sT0}, v{vL16}")
    g(f"ds_write_b128 v{vT}, {r(vT+4,4)} offset:{L_ONES}")
    g(f"v_add_u32 v{vQW}, {L_X}, v{vT}")
    g(f"v_xor_b32 v{vQR}, 0x1000, v{vT}")
    g(f"v_add_u32 v{vQR}, {L_X}, v{vQR}")
    g(f"s_lshl_b32 s{sT0}, s{sKH}, 15")
    g(f"s_add_u32 s{sT1}, s{sT0}, {L_K}")
    g(f"v_add_u32 v{vAK}, s{sT1}, v{vL16}")
    g(f"v_and_b32 v{vT}, 15, v0")
    g(f"v_lshlrev_b32 v{vT}, 3, v{vT}")
    g(f"v_bfe_u32 v{vT+1}, v0, 5, 1")
    g(f"v_lshlrev_b32 v{vT+1}, 8, v{vT+1}")
    g(f"s_add_u32 s{sT1}, s{sT0}, {L_V}")
    g(f"v_add_u32 v{vT+1}, s{sT1}, v{vT+1}")
    g(f"v_mov_b32 v{vT+2}, {L_ONES + 128}")
    g(f"v_and_b32 v{vT+3}, 16, v0")
    g(f"v_cmp_eq_u32 vcc, 0, v{vT+3}")
    g(f"v_mov_b32 v{vT+3}, {VPER*1024}")
    g(f"v_mov_b32 v{vIDX}, 0xdddddddd")
    g(f"v_cndmask_b32 v{vT+1}, v{vT+2}, v{vT+1}, vcc")
    g(f"v_cndmask_b32 v{vINC}, 0, v{vT+3}, vcc")
    g(f"v_add_u32 v{vAV}, v{vT}, v{vT+1}")
    npre = o.pre
    for i in range(npre):
        g(DMA_A); g("s_nop 0"); g(DMA_B)
    g(f"s_mul_i32 s{sT0}, s{sW}, {XSLOT}")
    g(f"s_xor_b32 s{sT1}, s{sW}, 4")
    g(f"s_mul_i32 s{sT1}, s{sT1}, {XSLOT}")
    g(f"s_add_u32 s{sT0}, s{sT0}, {L_X}")
    g(f"s_add_u32 s{sT1}, s{sT1}, {L_X}")
    g(f"v_lshrrev_b32 v{vT}, 2, v{vL16}")
    g(f"v_add_u32 v{vXW}, s{sT0}, v{vL16}")
    g(f"v_add_u32 v{vXR}, s{sT1}, v{vL16}")
    g(f"v_add_u32 v{vXW4}, s{sT0}, v{vT}")
    g(f"v_add_u32 v{vXR4}, s{sT1}, v{vT}")
    for i in range(16): g(f"v_mov_b32 v{ACC0+i}, 0")
    for i in range(16): g(f"v_mov_b32 v{ACC1+i}, 0")
    g.stamp()
    g(f"s_waitcnt vmcnt({2 + npre})")
    g.stamp()
    scale_q(g, Q0)
    g(f"ds_write_b128 v{vQW}, {r(Q0,4)}")
    g(f"s_waitcnt vmcnt({1 + npre})")
    g.c("first tile before the barrier (K fragment loaded directly)")
    qk(g, S0, KF[0], Q0)
    g("s_nop 11")
    exps(g, S0, 0, 16)
    g(f"s_waitcnt vmcnt({npre}) lgkmcnt(0)")
    g.stamp()
    g("s_barrier")
    g.stamp()
    if o.stamps: g("s_memrealtime s[94:95]")
    g(f"ds_read_b128 {r(Q1,4)}, v{vQR}")
    trd(g, VA[0], 0)
    trd(g, VA[0] + 2, 128)
    trd(g, VB[0], 512)
    trd(g, VB[0] + 2, 640)
    krd(g, KF[1], 1024)
    issued = 1 + npre
    covered = 1
    bars = dict(o.bars)
    for kt in range(31):
        extra = {}
        if kt in bars:
            need = bars[kt]
            assert need <= issued
            g(f"s_waitcnt vmcnt({issued - need})")
            g("s_barrier")
            covered = need
            if o.stampbars: g.stamp()
            if kt == 1:
                krd(g, KF[0], 2048)
                extra.setdefault(3, []).append("s_waitcnt lgkmcnt(4)")
            if o.prio: prio_hi_f(g)
        if kt >= 1: assert min(kt + 2, 31) < 2 * covered, (kt, covered)
        nd = o.dsched[kt] if kt < len(o.dsched) else o.dper
        for a, b in ((0, 1), (2, 3), (4, 5))[:nd]:
            if issued < 16:
                extra.setdefault(a, []).append(DMA_A)
                extra.setdefault(b, []).append(DMA_B)
                issued += 1
        if o.prio:
            for (fk, fm) in o.flips:
                if fk == kt: extra.setdefault(fm, []).append("s_setprio 0")
        if kt == 0: body0(g, extra)
        elif kt < 30: body(g, kt, extra)
        else: tail(g, extra)
    assert issued == 16
    g.stamp()
    if o.stamps: g("s_memrealtime s[96:97]")
    g("s_nop 11")
    fin(g, ACC1, PA)
    g.c("run-time safety check of the stand-in max: 1 <= l <= 2^80 and all outputs finite")
    g(f"v_cmp_le_f32 vcc, 1.0, v{ACC1+8}")
    g(f"v_pk_add_f32 {r(ACC1,2)}, {r(ACC1,2)}, {r(ACC1+2,2)}")
    g(f"s_mov_b64 s[{sT0}:{sT0+1}], vcc")
    g(f"v_cmp_ge_f32 vcc, 0x67800000, v{ACC1+8}")
    g(f"v_pk_add_f32 {r(ACC1+4,2)}, {r(ACC1+4,2)}, {r(ACC1+6,2)}")
    g(f"v_mov_b32 v{vT+4}, 0x1f8")
    g(f"s_and_b64 s[{sT0}:{sT0+1}], s[{sT0}:{sT0+1}], vcc")
    g(f"v_pk_add_f32 {r(ACC1,2)}, {r(ACC1,2)}, {r(ACC1+4,2)}")
    g(f"v_add_f32 v{ACC1}, v{ACC1}, v{ACC1+1}")
    g(f"v_cmp_class_f32 vcc, v{ACC1}, v{vT+4}")
    g(f"s_and_b64 s[{sT0}:{sT0+1}], s[{sT0}:{sT0+1}], vcc")
    if o.force_slow:
        g(f"s_mov_b64 s[{sT0}:{sT0+1}], 0")
    g(f"s_cmp_eq_u64 s[{sT0}:{sT0+1}], exec")
    g("s_cbranch_scc0 L_slow")
    if o.lite:
        g("s_waitcnt vmcnt(0)")
        g("s_memrealtime s[92:93]")
        g(f"s_lshl_b32 s{sT0}, s2, 3")
        g(f"s_add_u32 s{sT0}, s{sT0}, s{sW}")
        g(f"s_lshl_b32 s{sT0}, s{sT0}, 3")
        g(f"v_mov_b32 v{vT}, s{sT0}")
        g("s_waitcnt lgkmcnt(0)")
        g(f"v_mov_b32 v{vT+2}, s90")
        g(f"v_mov_b32 v{vT+3}, s92")
        g(f"global_store_dwordx2 v{vT}, v[{vT+2}:{vT+3}], s[42:43]")
    if o.stamps:
        g.stamp()
        g("s_memrealtime s[92:93]")
        g("s_waitcnt lgkmcnt(0)")
        g("s_barrier")
        g(f"s_lshl_b32 s{sT0}, s2, 3")
        g(f"s_add_u32 s{sT0}, s{sT0}, s{sW}")
        g(f"s_lshl_b32 s{sT0}, s{sT0}, 8")
        g(f"v_mov_b32 v{vT}, s{sT0}")
        regs = [sTS + 2 * i for i in range(g.nst)] + [90, 92, 94, 96]
        for i, sr in enumerate(regs):
            g(f"v_mov_b32 v{vT+2}, s{sr}")
            g(f"v_mov_b32 v{vT+3}, s{sr+1}")
            g(f"global_store_dwordx2 v{vT}, v[{vT+2}:{vT+3}], s[42:43] offset:{8*i}")
            g("s_nop 1")
        sys.stderr.write(f"nstamps={g.nst}\n")
    g.label("L_end")
    g("s_endpgm")
    g.label("L_slow")
    g.c("exact path: this wave recomputes its q tile (Q1) over all 2048 keys with the true row max")
    g("s_waitcnt vmcnt(0)")
    g.c("pass 1: true row max")
    g(f"v_add_u32 v{vAK}, {L_K}, v{vL16}")
    g(f"v_mov_b32 v{vT}, 0xff800000")
    g(f"s_mov_b32 s{sCNT}, 64")
    g.label("L_s1")
    krd(g, KF[0], 0)
    g("s_waitcnt lgkmcnt(0)")
    qk(g, S0, KF[0], Q1)
    g(f"v_add_u32 v{vAK}, 0x400, v{vAK}")
    g("s_nop 15")
    for i in range(8):
        g(f"v_max3_f32 v{vT}, v{vT}, v{S0+2*i}, v{S0+2*i+1}")
    g(f"s_sub_u32 s{sCNT}, s{sCNT}, 1")
    g(f"s_cmp_lg_u32 s{sCNT}, 0")
    g("s_cbranch_scc1 L_s1")
    g(f"v_mov_b32 v{vT+1}, v{vT}")
    g("s_nop 1")
    g(f"v_permlane32_swap_b32 v{vT}, v{vT+1}")
    g("s_nop 1")
    g(f"v_max_f32 v{vT}, v{vT}, v{vT+1}")
    for i in range(16): g(f"v_sub_f32 v{CB+i}, 0, v{vT}")
    for i in range(16): g(f"v_mov_b32 v{ACC1+i}, 0")
    g.c("pass 2: exp2(s - max), PV and row sum")
    g(f"v_add_u32 v{vAK}, {L_K}, v{vL16}")
    g(f"v_and_b32 v{vT}, 15, v0")
    g(f"v_lshlrev_b32 v{vT}, 3, v{vT}")
    g(f"v_bfe_u32 v{vT+1}, v0, 5, 1")
    g(f"v_lshlrev_b32 v{vT+1}, 8, v{vT+1}")
    g(f"v_add_u32 v{vT+1}, {L_V}, v{vT+1}")
    g(f"v_mov_b32 v{vT+2}, {L_ONES + 128}")
    g(f"v_cmp_ne_u32 vcc, 0, v{vINC}")
    g(f"v_mov_b32 v{vT+3}, 0x400")
    g("s_nop 0")
    g(f"v_cndmask_b32 v{vT+1}, v{vT+2}, v{vT+1}, vcc")
    g(f"v_cndmask_b32 v{vINC}, 0, v{vT+3}, vcc")
    g(f"v_add_u32 v{vAV}, v{vT}, v{vT+1}")
    g(f"s_mov_b32 s{sCNT}, 64")
    g.label("L_s2")
    krd(g, KF[0], 0)
    trd(g, VA[0], 0)
    trd(g, VA[0] + 2, 128)
    trd(g, VB[0], 512)
    trd(g, VB[0] + 2, 640)
    g("s_waitcnt lgkmcnt(0)")
    qk(g, S0, KF[0], Q1, r(CB, 16))
    g(f"v_add_u32 v{vAK}, 0x400, v{vAK}")
    g(f"v_add_u32 v{vAV}, v{vINC}, v{vAV}")
    g("s_nop 15")
    exps(g, S0, 0, 16)
    g("s_nop 1")
    smf(g, ACC1, VA[0], S0)
    smf(g, ACC1, VB[0], S0 + 8)
    g(f"s_sub_u32 s{sCNT}, s{sCNT}, 1")
    g(f"s_cmp_lg_u32 s{sCNT}, 0")
    g("s_cbranch_scc1 L_s2")
    g("s_nop 15")
    fin(g, ACC1, None)
    g("s_endpgm")
    g.L.append('.section .rodata,"a"')
    g.L.append(".p2align 6")
    g.L.append(f".amdhsa_kernel {NAME}_kernel")
    g.L.append(f"  .amdhsa_next_free_vgpr {NVGPR}")
    g.L.append(f"  .amdhsa_next_free_sgpr {100 if (o.stamps or o.lite) else 40}")
    g.L.append(f"  .amdhsa_accum_offset {(NVGPR+3)//4*4}")
    g.L.append("  .amdhsa_group_segment_fixed_size 0")
    g.L.append("  .amdhsa_kernarg_size 48")
    g.L.append("  .amdhsa_user_sgpr_count 2")
    g.L.append("  .amdhsa_user_sgpr_kernarg_segment_ptr 1")
    g.L.append("  .amdhsa_system_sgpr_workgroup_id_x 1")
    g.L.append(".end_amdhsa_kernel")
    return "\n".join(g.L) + "\n"

def parse(argv=None):
    ap = argparse.ArgumentParser()
    ap.add_argument("-o", default=f"cdna_kernels/{NAME}.s")
    ap.add_argument("--stamps", action="store_true")
    ap.add_argument("--stampbars", action="store_true")
    ap.add_argument("--lite", action="store_true")
    ap.add_argument("--force-slow", action="store_true")
    ap.add_argument("--pre", type=int, default=3)
    ap.add_argument("--dper", type=int, default=1)
    ap.add_argument("--prio", type=int, default=1)
    ap.add_argument("--bars", default="1:4,6:8,14:16")
    ap.add_argument("--flips", default="5.2,12.5,28.5")
    ap.add_argument("--stflags", default=" nt")
    ap.add_argument("--dsched", default="")
    ap.add_argument("--koff", type=int, default=-1)
    a = ap.parse_args(argv)
    a.bars = [tuple(map(int, x.split(":"))) for x in a.bars.split(",")]
    a.flips = [tuple(map(int, x.split("."))) for x in a.flips.split(",")]
    a.dsched = [int(x) for x in a.dsched.split(",")] if a.dsched else []
    return a

if __name__ == "__main__":
    a = parse()
    open(a.o, "w").write(build(a))
```

```python
import sys, argparse

NAME = "standalone__fused_io_aware_attn__prompt"

HEADER = """; Kernarg layout for this problem (48 bytes, ptrs only, base s[0:1]):
"""

DOC = """;
; Design (generated by a script of mine, hand-scheduled):
;    handles 64 queries (two 32-row tiles) against the key half kh (1024 keys); partner waves w / w^4 add
;  * K (MFMA-fragment order) and V (row major) of the head are streamed into LDS with LDS-DMA.
;    registers, i.e. P is used as bf16 without any packing instruction.  Rows 16 and 20 of the A operand are
;  * Softmax shift: the fast path uses the stand-in 0 for the row max and CHECKS at run time that this was safe
;    (1 <= l <= 2^80 and every output finite: no overflow happened and nothing underflowed that the exact
"""

L_ONES = 0
L_K = 8192
L_V = L_K + 65536
L_X = L_V + 65536
XSLOT = 2304
LDS_BYTES = L_X + 8 * XSLOT

vF = 1; vL16 = 2; vAK = 3; vAV = 4; vINC = 5; vIDX = 6
vXW = 7; vXW4 = 8; vXR = 9; vXR4 = 10; vD = 11
vT = 12
Q0 = 20; Q1 = 24
KF = [28, 32]; VA = [36, 40]; VB = [44, 48]
S0 = 52; S1 = 68; ACC0 = 84; ACC1 = 100
PA = 116
CB = 116
OA = 132
vQW = 136; vQR = 137
NVGPR = 138
sQ, sK, sV, sO = 4, 6, 8, 10
SRDD, SRDO = 12, 16
sW, sHEAD, sQP, sKH, sREG = 20, 21, 22, 23, 24
sQOWN, sKEEP = 25, 26
sM = 28
sT0, sT1 = 30, 31
sCNT = 32
sTS = 44

def r(base, n): return f"v[{base}:{base+n-1}]"

class Gen:
    def __init__(self, o):
        self.L = []; self.o = o; self.nst = 0; self.nl = 0; self.inloop = False
    def __call__(self, s): self.L.append("    " + s)
    def label(self, s): self.L.append(s + ":")
    def c(self, s): self.L.append("    ; " + s)
    def stamp(self):
        if self.o.stamps:
            i = sTS + 2 * self.nst
            self(f"s_memtime s[{i}:{i+1}]")
            self.nst += 1
    def newlabel(self):
        self.nl += 1
        return f"L_t{self.nl}"

def exps(g, S, lo, hi):
    for i in range(lo, hi):
        if g.o.xp == "mov": g(f"v_max_f32 v{S+i}, v{S+i}, v{S+i}"); g(f"v_max_f32 v{S+i}, v{S+i}, v{S+i}"); continue
        g(f"v_exp_f32 v{S+i}, v{S+i}")
        if g.o.xp == "and" and i > lo: g(f"v_and_b32 v{S+i-1}, 0xffff0000, v{S+i-1}")
        if g.o.xp == "andx" and i > lo: g(f"v_and_b32 v{PA+i-1}, 0xffff0000, v{S+i-1}")
    if g.o.xp == "and": g("s_nop 0"); g(f"v_and_b32 v{S+hi-1}, 0xffff0000, v{S+hi-1}")
    if g.o.xp == "andx": g("s_nop 0"); g(f"v_and_b32 v{PA+hi-1}, 0xffff0000, v{S+hi-1}")
def smf(g, acc, A, B): g(f"v_smfmac_f32_32x32x32_bf16 {r(acc,16)}, {r(A,4)}, {r(B,8)}, v{vIDX}")
def qk(g, S, K, Q, C=None):
    if C is None:
        C = g.o.cconst
        if g.o.xp == "creg": C = r(140 if Q == Q0 else 156, 16)
    g(f"v_mfma_f32_32x32x16_bf16 {r(S,16)}, {r(K,4)}, {r(Q,4)}, {C}")
def trd(g, dst, off):
    if g.inloop and g.o.xp == "nolds": g("s_nop 0"); return
    if g.inloop and g.o.xp in ("dummylds", "constV"): dst = PA
    g(f"ds_read_b64_tr_b16 {r(dst,2)}, v{vAV} offset:{off}")
def krd(g, dst, off):
    if g.inloop and g.o.xp == "nolds": g("s_nop 0"); return
    if g.inloop and g.o.xp in ("dummylds", "constK"): dst = PA + 4
    g(f"ds_read_b128 {r(dst,4)}, v{vAK} offset:{off}")
DMA_A = "s_addk_i32 m0, 0x800"
DMA_B = f"buffer_load_dwordx4 v{vD}, s[{SRDD}:{SRDD+3}], m0 offen lds"
VPER = 4

def body(g, kt, extra):
    f = kt & 1
    vo = ((kt % VPER) + 1) * 1024
    ko = (kt + 2) * 1024
    def X(m):
        for s in extra.get(m, []): g(s)
    exps(g, S1, 12, 16)
    exps(g, S0, 0, 2)
    smf(g, ACC1, VB[f ^ 1], S1 + 8)
    trd(g, VA[f ^ 1], vo)
    X(0)
    exps(g, S0, 2, 7)
    qk(g, S1, KF[f], Q1)
    trd(g, VA[f ^ 1] + 2, vo + 128)
    X(1)
    exps(g, S0, 7, 12)
    smf(g, ACC0, VA[f], S0)
    krd(g, KF[f], ko)
    X(2)
    exps(g, S0, 12, 16)
    exps(g, S1, 0, 2)
    smf(g, ACC0, VB[f], S0 + 8)
    trd(g, VB[f ^ 1], vo + 512)
    X(3)
    exps(g, S1, 2, 7)
    qk(g, S0, KF[f ^ 1], Q0)
    trd(g, VB[f ^ 1] + 2, vo + 640)
    X(4)
    exps(g, S1, 7, 12)
    smf(g, ACC1, VA[f], S1)
    g("s_waitcnt lgkmcnt(0)")
    X(5)
    if kt % VPER == VPER - 1:
        g(f"v_add_u32 v{vAV}, v{vINC}, v{vAV}")

def body0(g, extra):
    st = g.o.stamps
    def X(m):
        for s in extra.get(m, []): g(s)
    X(0)
    g("s_waitcnt lgkmcnt(5)" if not st else "s_waitcnt lgkmcnt(0)")
    qk(g, S1, KF[0], Q1)
    X(1)
    g("s_waitcnt lgkmcnt(3)" if not st else "s_nop 0")
    smf(g, ACC0, VA[0], S0)
    X(2)
    g("s_waitcnt lgkmcnt(0)")
    smf(g, ACC0, VB[0], S0 + 8)
    trd(g, VA[1], 1024)
    trd(g, VA[1] + 2, 1024 + 128)
    if g.o.b0need > 1: krd(g, KF[0], 2048)
    X(3)
    g("s_nop 5")
    exps(g, S1, 0, 7)
    qk(g, S0, KF[1], Q0)
    trd(g, VB[1], 1024 + 512)
    trd(g, VB[1] + 2, 1024 + 640)
    X(4)
    exps(g, S1, 7, 12)
    smf(g, ACC1, VA[0], S1)
    g("s_waitcnt lgkmcnt(0)")
    X(5)

def tail(g, extra):
    vo = ((30 % VPER) + 1) * 1024
    def X(m):
        for s in extra.get(m, []): g(s)
    exps(g, S1, 12, 16)
    exps(g, S0, 0, 2)
    smf(g, ACC1, VB[1], S1 + 8)
    trd(g, VA[1], vo)
    X(0)
    exps(g, S0, 2, 7)
    qk(g, S1, KF[1], Q0)
    trd(g, VA[1] + 2, vo + 128)
    X(1)
    exps(g, S0, 7, 12)
    smf(g, ACC0, VA[0], S0)
    trd(g, VB[1], vo + 512)
    X(2)
    exps(g, S0, 12, 16)
    exps(g, S1, 0, 2)
    smf(g, ACC0, VB[0], S0 + 8)
    trd(g, VB[1] + 2, vo + 640)
    X(3)
    exps(g, S1, 2, 7)
    qk(g, S0, KF[0], Q1)
    g("s_waitcnt lgkmcnt(0)")
    X(4)
    exps(g, S1, 7, 12)
    smf(g, ACC0, VA[1], S1)
    g("s_nop 0")
    X(5)
    exps(g, S1, 12, 16)
    exps(g, S0, 0, 2)
    smf(g, ACC0, VB[1], S1 + 8)
    exps(g, S0, 2, 7)
    qk(g, S1, KF[1], Q1)
    exps(g, S0, 7, 12)
    smf(g, ACC1, VA[0], S0)
    g.c("hand the partial result of tile Q0 to the partner wave")
    g(f"ds_write_b128 v{vXW}, {r(ACC0,4)}")
    g(f"ds_write_b128 v{vXW}, {r(ACC0+4,4)} offset:1024")
    g(f"ds_write_b32 v{vXW4}, v{ACC0+8} offset:2048")
    exps(g, S0, 12, 16)
    exps(g, S1, 0, 2)
    smf(g, ACC1, VB[0], S0 + 8)
    g("s_waitcnt lgkmcnt(0)")
    if g.o.stampbars: g.stamp()
    g("s_barrier")
    if g.o.stampbars: g.stamp()
    g(f"ds_read_b128 {r(PA,4)}, v{vXR}")
    g(f"ds_read_b128 {r(PA+4,4)}, v{vXR} offset:1024")
    g(f"ds_read_b32 v{PA+8}, v{vXR4} offset:2048")
    exps(g, S1, 2, 12)
    smf(g, ACC1, VA[1], S1)
    exps(g, S1, 12, 16)
    g("s_waitcnt lgkmcnt(0)")
    g("s_nop 0")
    smf(g, ACC1, VB[1], S1 + 8)

def scale_q(g, Q):
    for i in range(4):
        a, b = vT + 2 * i, vT + 2 * i + 1
        g(f"v_lshlrev_b32 v{a}, 16, v{Q+i}")
        g(f"v_and_b32 v{b}, 0xffff0000, v{Q+i}")
    for i in range(8):
        g(f"v_mul_f32 v{vT+i}, 0x3eb8aa3b, v{vT+i}")
    for i in range(4):
        g(f"v_cvt_pk_bf16_f32 v{Q+i}, v{vT+2*i}, v{vT+2*i+1}")

def prio_hi_f(g):
    l = g.newlabel()
    g(f"s_cmp_eq_u32 s{sKH}, 0")
    g(f"s_cbranch_scc1 {l}")
    g("s_setprio 1")
    g.label(l)

def fin(g, acc, P):
    rc = vT
    O = OA
    if P is not None:
        g(f"v_add_f32 v{acc+8}, v{acc+8}, v{P+8}")
        g(f"v_pk_add_f32 {r(acc,2)}, {r(acc,2)}, {r(P,2)}")
        g(f"v_rcp_f32 v{rc}, v{acc+8}")
        for i in range(1, 4): g(f"v_pk_add_f32 {r(acc+2*i,2)}, {r(acc+2*i,2)}, {r(P+2*i,2)}")
    else:
        g(f"v_rcp_f32 v{rc}, v{acc+8}")
        g("s_nop 0")
    for i in range(4): g(f"v_pk_mul_f32 {r(acc+2*i,2)}, {r(acc+2*i,2)}, {r(rc,2)} op_sel_hi:[1,0]")
    for i in (0, 2, 1, 3): g(f"v_cvt_pk_bf16_f32 v{O+i}, v{acc+2*i}, v{acc+2*i+1}")
    g("s_nop 0")
    g(f"v_permlane32_swap_b32 v{O}, v{O+2}")
    g(f"v_permlane32_swap_b32 v{O+1}, v{O+3}")
    g(f"buffer_store_dwordx4 {r(O,4)}, v{vF}, s[{SRDO}:{SRDO+3}], s{sKEEP} offen{g.o.stflags}")

def build(o):
    g = Gen(o)
    g.L.append(HEADER.rstrip("\n"))
    g.L.append(f"; @launch grid=(256,1,1) block=(512,1,1) lds={LDS_BYTES}")
    g.L.append(DOC.rstrip("\n"))
    g.L.append('.amdgcn_target "amdgcn-amd-amdhsa--gfx950"')
    g.L.append(".text")
    if o.koff >= 0:
        g.L.append(".p2align 12")
        if o.koff: g.L.append(f".fill {o.koff // 4}, 4, 0xbf810000")
    g.L.append(f".globl {NAME}_kernel")
    g.L.append(".p2align 8")
    g.L.append(f".type {NAME}_kernel,@function")
    g.label(f"{NAME}_kernel")
    g("s_cmp_ge_u32 s2, 256")
    g("s_cbranch_scc1 L_end")
    g("s_load_dwordx8 s[4:11], s[0:1], 0")
    if o.stamps or o.lite:
        g(f"s_load_dwordx2 s[42:43], s[0:1], 40")
        g("s_memrealtime s[90:91]")
    g.stamp()
    g(f"v_lshrrev_b32 v{vT}, 6, v0")
    g(f"v_and_b32 v{vT+1}, 31, v0")
    g(f"v_readfirstlane_b32 s{sW}, v{vT}")
    g(f"v_and_b32 v{vT+2}, 63, v0")
    g(f"v_lshlrev_b32 v{vT+1}, 5, v{vT+1}")
    g(f"v_bfe_u32 v{vT+3}, v0, 5, 1")
    g(f"v_lshl_add_u32 v{vF}, v{vT+3}, 4, v{vT+1}")
    g(f"v_lshlrev_b32 v{vL16}, 4, v{vT+2}")
    g.c("head = (wg&7)*4 + (wg>>6), qblock = (wg>>3)&7, qp = w&3, kh = w>>2")
    g(f"s_and_b32 s{sHEAD}, s2, 7")
    g(f"s_lshr_b32 s{sT0}, s2, 6")
    g(f"s_lshl_b32 s{sHEAD}, s{sHEAD}, 2")
    g(f"s_add_u32 s{sHEAD}, s{sHEAD}, s{sT0}")
    g(f"s_lshl_b32 s{sHEAD}, s{sHEAD}, 16")
    g(f"s_bfe_u32 s{sT0}, s2, 0x30003")
    g(f"s_lshl_b32 s{sT0}, s{sT0}, 13")
    g(f"s_add_u32 s{sQOWN}, s{sT0}, s{sHEAD}")
    g(f"s_and_b32 s{sQP}, s{sW}, 3")
    g(f"s_lshr_b32 s{sKH}, s{sW}, 2")
    g(f"s_lshl_b32 s{sT0}, s{sQP}, 11")
    g(f"s_add_u32 s{sQOWN}, s{sQOWN}, s{sT0}")
    g(f"s_lshl_b32 s{sT0}, s{sKH}, 10")
    g(f"s_add_u32 s{sQOWN}, s{sQOWN}, s{sT0}")
    g(f"v_add_u32 v{vT+4}, s{sQOWN}, v{vF}")
    g(f"s_lshl_b32 s{sT0}, s{sKH}, 15")
    g(f"s_add_u32 s{sT1}, s{sT0}, s{sHEAD}")
    g(f"v_add_u32 v{vT+5}, s{sT1}, v{vF}")
    g(f"s_mov_b32 s{SRDD+2}, {L_V + 65536}")
    g(f"s_mov_b32 s{SRDD+3}, 0x20000")
    g(f"s_lshr_b32 s{sT1}, s{sQP}, 1")
    g(f"s_lshl_b32 s{sT1}, s{sT1}, 10")
    g(f"s_add_u32 s{sT0}, s{sT0}, s{sT1}")
    g(f"s_and_b32 s{sREG}, s{sW}, 1")
    g(f"s_lshl_b32 s{sREG}, s{sREG}, 16")
    g(f"s_add_u32 s{sREG}, s{sREG}, {L_K}")
    g(f"s_add_u32 m0, s{sT0}, s{sREG}")
    g(f"s_bitcmp1_b32 s{sW}, 0")
    g(f"s_cselect_b64 s[{sM}:{sM+1}], -1, 0")
    g(f"v_cndmask_b32 v{vD}, v{vF}, v{vL16}, s[{sM}:{sM+1}]")
    g("s_waitcnt lgkmcnt(0)")
    g.stamp()
    g(f"global_load_dwordx4 {r(Q0,4)}, v{vT+4}, s[{sQ}:{sQ+1}]")
    g(f"global_load_dwordx4 {r(KF[0],4)}, v{vT+5}, s[{sK}:{sK+1}]")
    g.c("DMA descriptor: base = (k|v) + head offset - LDS region offset, so that soffset == m0")
    g(f"s_cselect_b64 s[{SRDD}:{SRDD+1}], s[{sV}:{sV+1}], s[{sK}:{sK+1}]")
    g(f"s_add_u32 s{SRDD}, s{SRDD}, s{sHEAD}")
    g(f"s_addc_u32 s{SRDD+1}, s{SRDD+1}, 0")
    g(f"s_sub_u32 s{SRDD}, s{SRDD}, s{sREG}")
    g(f"s_subb_u32 s{SRDD+1}, s{SRDD+1}, 0")
    g(DMA_B)
    g.stamp()
    g(f"s_mov_b32 s{SRDO}, s{sO}")
    g(f"s_mov_b32 s{SRDO+1}, s{sO+1}")
    g(f"s_mov_b32 s{SRDO+2}, 0x200000")
    g(f"s_mov_b32 s{SRDO+3}, 0x20000")
    g(f"s_xor_b32 s{sKEEP}, s{sQOWN}, 1024")
    g.c("constant A rows for the row sum (rows 16 and 20 = 1.0, the other padding rows 0)")
    g(f"v_and_b32 v{vT+4}, 1, v0")
    g(f"v_subrev_u32 v{vT+4}, 1, v{vT+4}")
    g(f"v_and_b32 v{vT+4}, 0x3f80, v{vT+4}")
    g(f"v_mov_b32 v{vT+5}, 0")
    g(f"v_mov_b32 v{vT+6}, v{vT+4}")
    g(f"v_mov_b32 v{vT+7}, 0")
    g(f"s_lshl_b32 s{sT0}, s{sW}, 10")
    g(f"v_add_u32 v{vT}, s{sT0}, v{vL16}")
    g(f"ds_write_b128 v{vT}, {r(vT+4,4)} offset:{L_ONES}")
    g(f"v_add_u32 v{vQW}, {L_X}, v{vT}")
    g(f"v_xor_b32 v{vQR}, 0x1000, v{vT}")
    g(f"v_add_u32 v{vQR}, {L_X}, v{vQR}")
    g(f"s_lshl_b32 s{sT0}, s{sKH}, 15")
    g(f"s_add_u32 s{sT1}, s{sT0}, {L_K}")
    g(f"v_add_u32 v{vAK}, s{sT1}, v{vL16}")
    g(f"v_and_b32 v{vT}, 15, v0")
    g(f"v_lshlrev_b32 v{vT}, 3, v{vT}")
    g(f"v_bfe_u32 v{vT+1}, v0, 5, 1")
    g(f"v_lshl_add_u32 v{vT+1}, v{vT+1}, 8, v{vT}")
    g(f"s_add_u32 s{sT1}, s{sT0}, {L_V}")
    g(f"v_add_u32 v{vT+1}, s{sT1}, v{vT+1}")
    if o.bcast:
        g(f"v_and_b32 v{vT}, 16, v{vT}")
    g(f"v_add_u32 v{vT+2}, {L_ONES + 128}, v{vT}")
    g(f"v_and_b32 v{vT+3}, 16, v0")
    g(f"v_cmp_eq_u32 vcc, 0, v{vT+3}")
    g(f"v_mov_b32 v{vT+3}, {VPER*1024}")
    g(f"v_mov_b32 v{vIDX}, 0xdddddddd")
    g(f"v_cndmask_b32 v{vAV}, v{vT+2}, v{vT+1}, vcc")
    g(f"v_cndmask_b32 v{vINC}, 0, v{vT+3}, vcc")
    npre = o.pre
    for i in range(npre):
        g(DMA_A); g("s_nop 0"); g(DMA_B)
    g(f"s_mul_i32 s{sT0}, s{sW}, {XSLOT}")
    g(f"s_xor_b32 s{sT1}, s{sW}, 4")
    g(f"s_mul_i32 s{sT1}, s{sT1}, {XSLOT}")
    g(f"s_add_u32 s{sT0}, s{sT0}, {L_X}")
    g(f"s_add_u32 s{sT1}, s{sT1}, {L_X}")
    g(f"v_lshrrev_b32 v{vT}, 2, v{vL16}")
    g(f"v_add_u32 v{vXW}, s{sT0}, v{vL16}")
    g(f"v_add_u32 v{vXR}, s{sT1}, v{vL16}")
    g(f"v_add_u32 v{vXW4}, s{sT0}, v{vT}")
    g(f"v_add_u32 v{vXR4}, s{sT1}, v{vT}")
    for i in range(16): g(f"v_mov_b32 v{ACC0+i}, 0")
    for i in range(16): g(f"v_mov_b32 v{ACC1+i}, 0")
    if o.xp == "creg":
        g(f"v_cvt_f32_u32 v140, v{vF}")
        g(f"v_mul_f32 v140, 0xbb5a3c00, v140")
        for i in range(1, 32): g(f"v_mov_b32 v{140+i}, v140")
    g.stamp()
    g(f"s_waitcnt vmcnt({2 + npre})")
    g.stamp()
    scale_q(g, Q0)
    g(f"ds_write_b128 v{vQW}, {r(Q0,4)}")
    g(f"s_waitcnt vmcnt({1 + npre})")
    g.c("first tile before the barrier (K fragment loaded directly)")
    qk(g, S0, KF[0], Q0)
    g("s_nop 11")
    exps(g, S0, 0, o.preexp)
    g(f"s_waitcnt vmcnt({npre + 1 - o.b0need}) lgkmcnt(0)")
    g.stamp()
    g("s_barrier")
    g.stamp()
    if o.stamps: g("s_memrealtime s[94:95]")
    g(f"ds_read_b128 {r(Q1,4)}, v{vQR}")
    trd(g, VA[0], 0)
    trd(g, VA[0] + 2, 128)
    trd(g, VB[0], 512)
    trd(g, VB[0] + 2, 640)
    krd(g, KF[1], 1024)
    exps(g, S0, o.preexp, 16)
    issued = 1 + npre
    covered = o.b0need
    if o.b0need > 1 and o.prio: prio_hi_f(g)
    bars = dict(o.bars)
    for kt in range(31):
        extra = {}
        if kt in bars:
            need = bars[kt]
            assert need <= issued
            g(f"s_waitcnt vmcnt({issued - need})")
            g("s_barrier")
            covered = need
            if o.stampbars: g.stamp()
            if kt == 1:
                krd(g, KF[0], 2048)
                extra.setdefault(3, []).append("s_waitcnt lgkmcnt(4)")
            if o.prio: prio_hi_f(g)
        if kt >= 1: assert min(kt + 2, 31) < 2 * covered, (kt, covered)
        nd = o.dsched[kt] if kt < len(o.dsched) else o.dper
        for a, b in ((0, 1), (2, 3), (4, 5))[:nd]:
            if issued < 16:
                extra.setdefault(a, []).append(DMA_A)
                extra.setdefault(b, []).append(DMA_B)
                issued += 1
        if o.prio:
            for (fk, fm) in o.flips:
                if fk == kt: extra.setdefault(fm, []).append("s_setprio 0")
        g.inloop = 2 <= kt < 30
        if kt == 2 and o.xp == "zeroV":
            g(f"v_mov_b32 v{vAV}, {L_ONES + 24}"); g(f"v_mov_b32 v{vINC}, 0")
        if kt == 0: body0(g, extra)
        elif kt < 30: body(g, kt, extra)
        else: tail(g, extra)
    assert issued == 16
    g.stamp()
    if o.stamps: g("s_memrealtime s[96:97]")
    g("s_nop 11")
    fin(g, ACC1, PA)
    g.c("run-time safety check of the stand-in max: 1 <= l <= 2^80 and all outputs finite")
    g(f"v_cmp_le_f32 vcc, 1.0, v{ACC1+8}")
    g(f"v_pk_add_f32 {r(ACC1,2)}, {r(ACC1,2)}, {r(ACC1+2,2)}")
    g(f"s_mov_b64 s[{sT0}:{sT0+1}], vcc")
    g(f"v_cmp_ge_f32 vcc, 0x67800000, v{ACC1+8}")
    g(f"v_pk_add_f32 {r(ACC1+4,2)}, {r(ACC1+4,2)}, {r(ACC1+6,2)}")
    g(f"v_mov_b32 v{vT+4}, 0x1f8")
    g(f"s_and_b64 s[{sT0}:{sT0+1}], s[{sT0}:{sT0+1}], vcc")
    g(f"v_pk_add_f32 {r(ACC1,2)}, {r(ACC1,2)}, {r(ACC1+4,2)}")
    g(f"v_add_f32 v{ACC1}, v{ACC1}, v{ACC1+1}")
    g(f"v_cmp_class_f32 vcc, v{ACC1}, v{vT+4}")
    g(f"s_and_b64 s[{sT0}:{sT0+1}], s[{sT0}:{sT0+1}], vcc")
    if o.xp != "none":
        g(f"s_mov_b64 s[{sT0}:{sT0+1}], exec")
    if o.force_slow:
        g(f"s_mov_b64 s[{sT0}:{sT0+1}], 0")
    g(f"s_cmp_eq_u64 s[{sT0}:{sT0+1}], exec")
    g("s_cbranch_scc0 L_slow")
    if o.lite:
        g("s_waitcnt vmcnt(0)")
        g("s_memrealtime s[92:93]")
        g(f"s_lshl_b32 s{sT0}, s2, 3")
        g(f"s_add_u32 s{sT0}, s{sT0}, s{sW}")
        g(f"s_lshl_b32 s{sT0}, s{sT0}, 3")
        g(f"v_mov_b32 v{vT}, s{sT0}")
        g("s_waitcnt lgkmcnt(0)")
        g(f"v_mov_b32 v{vT+2}, s90")
        g(f"v_mov_b32 v{vT+3}, s92")
        g(f"global_store_dwordx2 v{vT}, v[{vT+2}:{vT+3}], s[42:43]")
    if o.stamps:
        g.stamp()
        g("s_memrealtime s[92:93]")
        g("s_waitcnt lgkmcnt(0)")
        g("s_barrier")
        g(f"s_lshl_b32 s{sT0}, s2, 3")
        g(f"s_add_u32 s{sT0}, s{sT0}, s{sW}")
        g(f"s_lshl_b32 s{sT0}, s{sT0}, 8")
        g(f"v_mov_b32 v{vT}, s{sT0}")
        regs = [sTS + 2 * i for i in range(g.nst)] + [90, 92, 94, 96]
        for i, sr in enumerate(regs):
            g(f"v_mov_b32 v{vT+2}, s{sr}")
            g(f"v_mov_b32 v{vT+3}, s{sr+1}")
            g(f"global_store_dwordx2 v{vT}, v[{vT+2}:{vT+3}], s[42:43] offset:{8*i}")
            g("s_nop 1")
        sys.stderr.write(f"nstamps={g.nst}\n")
    g.label("L_end")
    g("s_endpgm")
    g.label("L_slow")
    g.c("exact path: this wave recomputes its q tile (Q1) over all 2048 keys with the true row max")
    g("s_waitcnt vmcnt(0)")
    g.c("pass 1: true row max")
    g(f"v_add_u32 v{vAK}, {L_K}, v{vL16}")
    g(f"v_mov_b32 v{vT}, 0xff800000")
    g(f"s_mov_b32 s{sCNT}, 64")
    g.label("L_s1")
    krd(g, KF[0], 0)
    g("s_waitcnt lgkmcnt(0)")
    qk(g, S0, KF[0], Q1, "0")
    g(f"v_add_u32 v{vAK}, 0x400, v{vAK}")
    g("s_nop 15")
    for i in range(8):
        g(f"v_max3_f32 v{vT}, v{vT}, v{S0+2*i}, v{S0+2*i+1}")
    g(f"s_sub_u32 s{sCNT}, s{sCNT}, 1")
    g(f"s_cmp_lg_u32 s{sCNT}, 0")
    g("s_cbranch_scc1 L_s1")
    g(f"v_mov_b32 v{vT+1}, v{vT}")
    g("s_nop 1")
    g(f"v_permlane32_swap_b32 v{vT}, v{vT+1}")
    g("s_nop 1")
    g(f"v_max_f32 v{vT}, v{vT}, v{vT+1}")
    for i in range(16): g(f"v_sub_f32 v{CB+i}, 0, v{vT}")
    for i in range(16): g(f"v_mov_b32 v{ACC1+i}, 0")
    g.c("pass 2: exp2(s - max), PV and row sum")
    g(f"v_add_u32 v{vAK}, {L_K}, v{vL16}")
    g(f"v_and_b32 v{vT}, 15, v0")
    g(f"v_lshlrev_b32 v{vT}, 3, v{vT}")
    g(f"v_bfe_u32 v{vT+1}, v0, 5, 1")
    g(f"v_lshlrev_b32 v{vT+1}, 8, v{vT+1}")
    g(f"v_add_u32 v{vT+1}, {L_V}, v{vT+1}")
    g(f"v_mov_b32 v{vT+2}, {L_ONES + 128}")
    g(f"v_cmp_ne_u32 vcc, 0, v{vINC}")
    g(f"v_mov_b32 v{vT+3}, 0x400")
    g("s_nop 0")
    g(f"v_cndmask_b32 v{vT+1}, v{vT+2}, v{vT+1}, vcc")
    g(f"v_cndmask_b32 v{vINC}, 0, v{vT+3}, vcc")
    g(f"v_add_u32 v{vAV}, v{vT}, v{vT+1}")
    g(f"s_mov_b32 s{sCNT}, 64")
    g.label("L_s2")
    krd(g, KF[0], 0)
    trd(g, VA[0], 0)
    trd(g, VA[0] + 2, 128)
    trd(g, VB[0], 512)
    trd(g, VB[0] + 2, 640)
    g("s_waitcnt lgkmcnt(0)")
    qk(g, S0, KF[0], Q1, r(CB, 16))
    g(f"v_add_u32 v{vAK}, 0x400, v{vAK}")
    g(f"v_add_u32 v{vAV}, v{vINC}, v{vAV}")
    g("s_nop 15")
    exps(g, S0, 0, 16)
    g("s_nop 1")
    smf(g, ACC1, VA[0], S0)
    smf(g, ACC1, VB[0], S0 + 8)
    g(f"s_sub_u32 s{sCNT}, s{sCNT}, 1")
    g(f"s_cmp_lg_u32 s{sCNT}, 0")
    g("s_cbranch_scc1 L_s2")
    g("s_nop 15")
    fin(g, ACC1, None)
    g("s_endpgm")
    g.L.append('.section .rodata,"a"')
    g.L.append(".p2align 6")
    g.L.append(f".amdhsa_kernel {NAME}_kernel")
    NV = 172 if o.xp == "creg" else NVGPR
    g.L.append(f"  .amdhsa_next_free_vgpr {NV}")
    g.L.append(f"  .amdhsa_next_free_sgpr {100 if (o.stamps or o.lite) else 40}")
    g.L.append(f"  .amdhsa_accum_offset {(NV+3)//4*4}")
    g.L.append("  .amdhsa_group_segment_fixed_size 0")
    g.L.append("  .amdhsa_kernarg_size 48")
    g.L.append("  .amdhsa_user_sgpr_count 2")
    g.L.append("  .amdhsa_user_sgpr_kernarg_segment_ptr 1")
    g.L.append("  .amdhsa_system_sgpr_workgroup_id_x 1")
    g.L.append(".end_amdhsa_kernel")
    return "\n".join(g.L) + "\n"

def parse(argv=None):
    ap = argparse.ArgumentParser()
    ap.add_argument("-o", default=f"cdna_kernels/{NAME}.s")
    ap.add_argument("--stamps", action="store_true")
    ap.add_argument("--stampbars", action="store_true")
    ap.add_argument("--lite", action="store_true")
    ap.add_argument("--force-slow", action="store_true")
    ap.add_argument("--pre", type=int, default=3)
    ap.add_argument("--dper", type=int, default=1)
    ap.add_argument("--prio", type=int, default=1)
    ap.add_argument("--bars", default="1:4,6:8,14:16")
    ap.add_argument("--flips", default="5.2,12.5,28.5")
    ap.add_argument("--stflags", default=" nt")
    ap.add_argument("--dsched", default="")
    ap.add_argument("--koff", type=int, default=-1)
    ap.add_argument("--b0need", type=int, default=1)
    ap.add_argument("--xp", default="none")
    ap.add_argument("--bcast", type=int, default=1)
    ap.add_argument("--preexp", type=int, default=16)
    ap.add_argument("--cconst", default="0")
    a = ap.parse_args(argv)
    a.bars = [tuple(map(int, x.split(":"))) for x in a.bars.split(",")]
    a.flips = [tuple(map(int, x.split("."))) for x in a.flips.split(",")]
    a.dsched = [int(x) for x in a.dsched.split(",")] if a.dsched else []
    return a

if __name__ == "__main__":
    a = parse()
    open(a.o, "w").write(build(a))
```
